```python
import torch

def _softmax(x, axis=-1):
    return torch.softmax(x, dim=axis)
def _gelu(x):
    return torch.nn.functional.gelu(x, approximate="tanh")
def _silu(x):
    return torch.nn.functional.silu(x)
def _sigmoid(x):
    return torch.sigmoid(x)
def _layernorm(x, axis=-1, eps=1e-5):
    m = x.mean(dim=axis, keepdim=True)
    v = x.var(dim=axis, keepdim=True, unbiased=False)
    return (x - m) / torch.sqrt(v + eps)
def _scatter_add(tgt, idx, src, axis=0):
    return tgt.clone().index_add_(axis, idx, src)
def _segment_sum(src, seg, n):
    out = torch.zeros((n,) + src.shape[1:], dtype=src.dtype)
    return out.index_add_(0, seg, src)
def _pad(x, pw):
    flat = tuple(v for pair in reversed(pw) for v in pair)
    return torch.nn.functional.pad(x, flat)

kernel_name = 'standalone__gqa_softmax__sampling'

def setup_inputs():

    _w = (lambda a: (lambda t: t.to(torch.bfloat16) if t.is_floating_point() else t)(torch.as_tensor(a)))
    B, Hq, Hkv, Sq, Sk, D = 32, 32, 4, 4, 2048, 128
    return {
        "q": _w((lambda *s: torch.randn(*s, dtype=torch.bfloat16) * 0.8)(B, Hq, Sq, D)),
        "k": _w((lambda *s: torch.randn(*s, dtype=torch.bfloat16) * 0.8)(B, Hkv, Sk, D)),
        "v": _w((lambda *s: torch.randn(*s, dtype=torch.bfloat16) * 0.05)(B, Hkv, Sk, D)),
    }

def reference(q, k, v):
    B, Hq, Sq, D = q.shape
    Hkv = k.shape[1]
    rep = Hq // Hkv
    k = (lambda x, n, axis: torch.repeat_interleave(x, n, dim=axis))(k, rep, axis=1)
    v = (lambda x, n, axis: torch.repeat_interleave(x, n, dim=axis))(v, rep, axis=1)
    scale = D ** -0.5
    scores = torch.einsum("bhqd,bhkd->bhqk", q, k) * scale
    p = _softmax(scores, axis=-1)
    return torch.einsum("bhqk,bhkd->bhqd", p, v)
```

```python
import sys, math, subprocess, struct

def f2u(x): return struct.unpack('<I', struct.pack('<f', x))[0]

HEADER = """; Kernarg layout for this problem (48 bytes, ptrs only, base s[0:1]):
"""
NAME = "standalone__gqa_softmax__sampling_kernel"

def gen(TA=8, POL="nt", ORDER=4, name=NAME):
    TB = 16 - TA
    L = []
    def a(s): L.append("    " + s)
    def lab(s): L.append(s + ":")
    QBASE, MBUF, LBUF, LDS = 131072, 139264, 139776, 140288
    C = f2u(128 ** -0.5 * math.log2(math.e))
    vQ = 8
    vS = 40
    vP = 56
    vO = 64
    vK = 128
    vV = 160
    vKA = 192
    vVA = 200
    vKO = 204
    vVO = 208
    vM, vL, vAL, vT0, vT1, vT2, vT3 = 209, 210, 211, 212, 213, 214, 215
    vLN = 216
    vX = 220
    NV = 240
    woff = 8192 if ORDER == 8 else 4096
    hoff = 4096 if ORDER == 8 else 16384
    def r(b, n): return f"v[{b}:{b+n-1}]"

    a(f"s_cmp_ge_u32 s2, 256")
    a(f"s_cbranch_scc1 L_end")
    a("s_load_dwordx8 s[4:11], s[0:1], 0")
    a("s_load_dwordx4 s[12:15], s[0:1], 32")
    a("v_lshrrev_b32 v1, 6, v0")
    a(f"v_and_b32 v{vLN}, 63, v0")
    a("v_readfirstlane_b32 s3, v1")
    a("s_lshr_b32 s16, s2, 1")
    a("s_and_b32 s17, s2, 1")
    a(f"v_lshrrev_b32 v2, 4, v{vLN}")
    a(f"v_and_b32 v3, 15, v{vLN}")
    a("s_cmp_eq_u32 s17, 0")
    a(f"s_cselect_b32 s18, {TA}, {TB}")
    a(f"s_cselect_b32 s48, 0, {TA*32768}")
    a("s_lshl_b32 s47, s18, 15")
    a("s_lshl_b32 s49, s16, 19")
    a("s_add_u32 s48, s48, s49")
    a(f"s_mul_i32 s50, s3, {woff}")
    a(f"v_lshlrev_b32 v4, 8, v2")
    a(f"v_add_u32 v4, s50, v4")
    for j in range(4):
        a(f"v_add_u32 v5, {4*j}, v2")
        a(f"v_xor_b32 v5, v5, v3")
        a(f"v_lshl_add_u32 v{vKO+j}, v5, 4, v4")
    a(f"v_lshlrev_b32 v5, 2, v2")
    a(f"v_xor_b32 v5, v5, v3")
    a(f"v_lshl_add_u32 v{vVO}, v5, 4, v4")
    a("s_lshl_b32 s51, s3, 3")
    a("v_add_u32 v6, s51, v2")
    a("v_lshlrev_b32 v4, 8, v6")
    a("v_and_b32 v5, 15, v6")
    a("v_xor_b32 v5, v5, v3")
    a(f"v_lshl_add_u32 v{vX}, v5, 4, v4")
    a("v_add_u32 v5, 4, v6")
    a("v_and_b32 v5, 15, v5")
    a("v_xor_b32 v5, v5, v3")
    a(f"v_lshl_add_u32 v{vX+1}, v5, 4, v4")
    a("s_lshl_b32 s44, s3, 15")
    a("s_add_u32 s45, s44, 16384")
    a("s_lshl_b32 s52, s3, 11")
    a(f"s_add_u32 s52, s52, {QBASE}")
    a("s_lshl_b32 s53, s16, 13")
    a("s_mov_b32 s23, 0x20000")
    a("s_mov_b32 s27, 0x20000")
    a("s_mov_b32 s31, 0x20000")
    a("s_mov_b32 s30, 8192")
    a("s_mov_b32 s40, 0")
    a("s_mov_b32 s41, 0")
    a("s_mov_b32 m0, s52")
    a("s_waitcnt lgkmcnt(0)")
    a("s_add_u32 s28, s4, s53")
    a("s_addc_u32 s29, s5, 0")
    a("s_add_u32 s20, s6, s48")
    a("s_addc_u32 s21, s7, 0")
    a("s_add_u32 s24, s8, s48")
    a("s_addc_u32 s25, s9, 0")
    a(f"buffer_load_dwordx4 v{vX}, s[28:31], 0 offen lds")
    a(f"buffer_load_dwordx4 v{vX+1}, s[28:31], 0 offen offset:1024 lds")

    def dma(kind):
        srd, so, slot, nrec = (("s[20:23]", "s40", "s44", "s22") if kind == 'k' else ("s[24:27]", "s41", "s45", "s26"))
        a(f"s_cmp_lt_u32 {so}, s47")
        a(f"s_cselect_b32 {nrec}, s47, 0")
        a(f"s_mov_b32 m0, {slot}")
        a(f"s_add_u32 s42, {so}, {hoff}")
        for j in range(4):
            vo = vKO + j if kind == 'k' else vVO
            a(f"buffer_load_dwordx4 v{vo}, {srd}, {so} offen offset:{j*1024} {POL} lds")
        a(f"s_add_u32 m0, {slot}, 4096")
        a(f"s_add_u32 {so}, {so}, 32768")
        for j in range(4):
            vo = vKO + j if kind == 'k' else vVO
            a(f"buffer_load_dwordx4 v{vo}, {srd}, s42 offen offset:{j*1024} {POL} lds")
        a(f"s_xor_b32 {slot}, {slot}, 8192")
    dma('k'); dma('k'); dma('v')
    a(f"v_and_b32 v2, 31, v{vLN}")
    a(f"v_lshrrev_b32 v3, 5, v{vLN}")
    a("v_and_b32 v4, 15, v2")
    a("v_xor_b32 v4, v4, v3")
    a("v_lshlrev_b32 v5, 8, v2")
    a(f"v_add_u32 v5, {QBASE}, v5")
    for m in range(8):
        a(f"v_xor_b32 v6, {2*m}, v4")
        a(f"v_lshl_add_u32 v{vKA+m}, v6, 4, v5")
    a(f"v_bfe_u32 v2, v{vLN}, 2, 2")
    a(f"v_and_b32 v4, 3, v{vLN}")
    a(f"v_bfe_u32 v5, v{vLN}, 4, 1")
    a("v_lshlrev_b32 v4, 3, v4")
    a("v_lshl_add_u32 v4, v5, 5, v4")
    a("v_lshl_add_u32 v5, v3, 2, v2")
    a("v_lshl_add_u32 v4, v5, 8, v4")
    a("s_lshl_b32 s54, s3, 15")
    a("s_add_u32 s55, s54, 16384")
    a("v_add_u32 v4, s55, v4")
    for db in range(4):
        a(f"v_xor_b32 v6, {db}, v2")
        a(f"v_lshl_add_u32 v{vVA+db}, v6, 6, v4")
    for i in range(64):
        a(f"v_mov_b32 v{vO+i}, 0")
    a(f"s_mov_b32 s46, {C:#x}")
    a(f"s_sub_u32 s56, s54, {QBASE}")
    a(f"s_sub_u32 s19, s18, 1")
    a("s_add_u32 s32, s10, s53")
    a("s_addc_u32 s33, s11, 0")
    a("s_mov_b32 s34, 8192")
    a("s_mov_b32 s35, 0x20000")
    a("s_lshl_b32 s57, s16, 15")
    a("s_add_u32 s36, s14, s57")
    a("s_addc_u32 s37, s15, 0")
    a("s_mov_b32 s38, 32768")
    a("s_mov_b32 s39, 0x20000")
    a("s_waitcnt vmcnt(24)")
    a("s_barrier")
    for m in range(8):
        a(f"ds_read_b128 {r(vQ+4*m,4)}, v{vKA+m}")
    for m in range(8):
        a(f"v_add_u32 v{vKA+m}, s56, v{vKA+m}")

    def kread():
        for m in range(8):
            a(f"ds_read_b128 {r(vK+4*m,4)}, v{vKA+m}")
    def qk():
        for m in range(8):
            a(f"s_waitcnt lgkmcnt({7-m})")
            c = "0" if m == 0 else r(vS, 16)
            a(f"v_mfma_f32_32x32x16_bf16 {r(vS,16)}, {r(vK+4*m,4)}, {r(vQ+4*m,4)}, {c}")
    def ktoggle():
        for m in range(8):
            a(f"v_xor_b32 v{vKA+m}, 0x2000, v{vKA+m}")
    def tilemax():
        a(f"v_max3_f32 v{vT0}, v{vS}, v{vS+1}, v{vS+2}")
        a(f"v_max3_f32 v{vT1}, v{vS+3}, v{vS+4}, v{vS+5}")
        a(f"v_max3_f32 v{vT2}, v{vS+6}, v{vS+7}, v{vS+8}")
        a(f"v_max3_f32 v{vT3}, v{vS+9}, v{vS+10}, v{vS+11}")
        a(f"v_max3_f32 v{vT0}, v{vT0}, v{vS+12}, v{vS+13}")
        a(f"v_max3_f32 v{vT1}, v{vT1}, v{vS+14}, v{vS+15}")
        a(f"v_max3_f32 v{vT0}, v{vT0}, v{vT1}, v{vT2}")
        a(f"v_max_f32 v{vT0}, v{vT0}, v{vT3}")
        a(f"v_mov_b32 v{vT1}, v{vT0}")
        a("s_nop 1")
        a(f"v_permlane32_swap_b32 v{vT0}, v{vT1}")
        a("s_nop 0")
        a(f"v_max_f32 v{vT0}, v{vT0}, v{vT1}")
        a(f"v_mul_f32 v{vT0}, s46, v{vT0}")
    def exps(first):
        if not first:
            a(f"v_sub_f32 v{vAL}, v{vM}, v{vT0}")
        a(f"v_mov_b32 v{vM}, v{vT0}")
        for i in range(16):
            a(f"v_fma_f32 v{vS+i}, v{vS+i}, s46, -v{vT0}")
        if not first:
            a(f"v_exp_f32 v{vAL}, v{vAL}")
        for i in range(16):
            a(f"v_exp_f32 v{vS+i}, v{vS+i}")
        a(f"v_add_f32 v{vT0}, v{vS}, v{vS+1}")
        a(f"v_add_f32 v{vT1}, v{vS+2}, v{vS+3}")
        a(f"v_add_f32 v{vT2}, v{vS+4}, v{vS+5}")
        a(f"v_add_f32 v{vT3}, v{vS+6}, v{vS+7}")
        for i in range(8):
            t = [vT0, vT1, vT2, vT3][i % 4]
            a(f"v_add_f32 v{t}, v{t}, v{vS+8+i}")
        a(f"v_add_f32 v{vT0}, v{vT0}, v{vT1}")
        a(f"v_add_f32 v{vT2}, v{vT2}, v{vT3}")
        if first:
            a(f"v_add_f32 v{vL}, v{vT0}, v{vT2}")
            a(f"v_mov_b32 v{vAL}, 1.0")
        else:
            a(f"v_add_f32 v{vT0}, v{vT0}, v{vT2}")
            a(f"v_fma_f32 v{vL}, v{vL}, v{vAL}, v{vT0}")
    def cvtp():
        for i in range(8):
            a(f"v_cvt_pk_bf16_f32 v{vP+i}, v{vS+2*i}, v{vS+2*i+1}")
    def oscale():
        for i in range(64):
            a(f"v_mul_f32 v{vO+i}, v{vAL}, v{vO+i}")
    def vread(s):
        for db in range(4):
            for u in (2*s, 2*s+1):
                a(f"ds_read_b64_tr_b16 {r(vV + s*16 + db*4 + (u&1)*2, 2)}, v{vVA+db} offset:{2048*u}")
    def pv(s, outstanding_after):
        for db in range(4):
            a(f"s_waitcnt lgkmcnt({outstanding_after + 6 - 2*db})")
            a(f"v_mfma_f32_32x32x16_bf16 {r(vO+16*db,16)}, {r(vV+s*16+db*4,4)}, {r(vP+4*s,4)}, {r(vO+16*db,16)}")
    def vtoggle():
        for db in range(4):
            a(f"v_xor_b32 v{vVA+db}, 0x2000, v{vVA+db}")

    a("s_waitcnt vmcnt(16) lgkmcnt(0)")
    kread(); qk()
    dma('k'); dma('v')
    ktoggle()
    tilemax()
    exps(True)
    cvtp()
    lab("L_loop")
    a("s_waitcnt vmcnt(24)")
    kread()
    oscale()
    qk()
    dma('k')
    ktoggle()
    tilemax()
    a(f"v_max_f32 v{vT0}, v{vT0}, v{vM}")
    a("s_cmp_lg_u32 s19, 1")
    a("s_cbranch_scc1 L_noxchg")
    a(f"v_and_b32 v{vX}, 31, v{vLN}")
    a(f"v_lshlrev_b32 v{vX}, 4, v{vX}")
    a(f"v_add_u32 v{vX}, {MBUF}, v{vX}")
    a(f"s_lshl_b32 s58, s3, 2")
    a(f"v_add_u32 v{vX+1}, s58, v{vX}")
    a(f"ds_write_b32 v{vX+1}, v{vT0}")
    a("s_waitcnt lgkmcnt(0)")
    a("s_barrier")
    a(f"ds_read_b128 {r(vX+4,4)}, v{vX}")
    a("s_waitcnt lgkmcnt(0)")
    a(f"v_max3_f32 v{vT0}, v{vX+4}, v{vX+5}, v{vX+6}")
    a(f"v_max_f32 v{vT0}, v{vT0}, v{vX+7}")
    lab("L_noxchg")
    exps(False)
    a("s_waitcnt vmcnt(24)")
    vread(0); vread(1)
    pv(0, 8); pv(1, 0)
    dma('v')
    vtoggle()
    cvtp()
    a("s_sub_u32 s19, s19, 1")
    a("s_cmp_lg_u32 s19, 0")
    a("s_cbranch_scc1 L_loop")
    a(f"v_mov_b32 v{vT1}, v{vL}")
    a("s_nop 1")
    a(f"v_permlane32_swap_b32 v{vL}, v{vT1}")
    a("s_nop 0")
    a(f"v_add_f32 v{vL}, v{vL}, v{vT1}")
    a(f"ds_write_b32 v{vX+1}, v{vL} offset:{LBUF-MBUF}")
    oscale()
    a(f"v_and_b32 v2, 31, v{vLN}")
    a(f"v_lshrrev_b32 v3, 5, v{vLN}")
    a("v_and_b32 v4, 7, v2")
    a("v_xor_b32 v4, v4, v3")
    a("v_lshlrev_b32 v5, 9, v2")
    a("v_add_u32 v5, s54, v5")
    for g in range(4):
        a(f"v_xor_b32 v6, {2*g}, v4")
        a(f"v_lshl_add_u32 v{vX+8+g}, v6, 4, v5")
    a(f"v_lshrrev_b32 v2, 4, v{vLN}")
    a("v_add_u32 v2, s51, v2")
    a(f"v_and_b32 v3, 15, v{vLN}")
    a("v_lshlrev_b32 v3, 1, v3")
    for kk in range(2):
        a(f"v_add_u32 v4, {4*kk}, v2")
        a("v_and_b32 v5, 7, v4")
        a("v_xor_b32 v5, v5, v3")
        a("v_lshlrev_b32 v6, 9, v4")
        a(f"v_lshl_add_u32 v{vX+12+2*kk}, v5, 4, v6")
        a(f"v_xor_b32 v{vX+13+2*kk}, 16, v{vX+12+2*kk}")
    for i in range(4):
        a(f"v_add_u32 v{vX+16+i}, 0x10000, v{vX+12+i}")
    a("v_lshlrev_b32 v2, 4, v2")
    a(f"v_add_u32 v2, {MBUF}, v2")
    a("s_waitcnt lgkmcnt(0)")
    a("s_barrier")
    a(f"ds_read_b128 {r(vK,4)}, v2")
    a(f"ds_read_b128 {r(vK+4,4)}, v2 offset:64")
    a(f"ds_read_b128 {r(vK+8,4)}, v2 offset:{LBUF-MBUF}")
    a(f"ds_read_b128 {r(vK+12,4)}, v2 offset:{LBUF-MBUF+64}")
    a(f"v_lshlrev_b32 v7, 4, v{vLN}")
    a("s_waitcnt lgkmcnt(0)")
    a(f"v_max3_f32 v{vS}, v{vK}, v{vK+1}, v{vK+2}")
    a(f"v_max3_f32 v{vS+2}, v{vK+4}, v{vK+5}, v{vK+6}")
    a(f"v_max_f32 v{vS}, v{vS}, v{vK+3}")
    a(f"v_max_f32 v{vS+2}, v{vS+2}, v{vK+7}")
    a(f"v_add_f32 v{vS+1}, v{vK+8}, v{vK+9}")
    a(f"v_add_f32 v{vS+3}, v{vK+12}, v{vK+13}")
    a(f"v_add_f32 v{vS+1}, v{vS+1}, v{vK+10}")
    a(f"v_add_f32 v{vS+3}, v{vS+3}, v{vK+14}")
    a(f"v_add_f32 v{vS+1}, v{vS+1}, v{vK+11}")
    a(f"v_add_f32 v{vS+3}, v{vS+3}, v{vK+15}")
    a("s_waitcnt vmcnt(20)")
    vread(0)
    a("s_waitcnt vmcnt(16)")
    vread(1)
    pv(0, 8); pv(1, 0)
    a("s_waitcnt vmcnt(0)")
    a("s_nop 7")
    for db in range(4):
        if db == 3: a("s_nop 0")
        for g in range(4):
            a(f"ds_write_b128 v{vX+8+g}, {r(vO+16*db+4*g,4)} offset:{128*db}")
    a("s_waitcnt lgkmcnt(0)")
    a("s_barrier")
    for src in range(4):
        for i in range(4):
            ad = vX + 12 + i + (4 if src >= 2 else 0)
            a(f"ds_read_b128 {r(vO+16*src+4*i,4)}, v{ad} offset:{32768*(src&1)}")
    a("s_waitcnt lgkmcnt(8)")
    for i in range(16):
        a(f"v_add_f32 v{vO+i}, v{vO+i}, v{vO+16+i}")
    a("s_waitcnt lgkmcnt(0)")
    for i in range(16):
        a(f"v_add_f32 v{vO+32+i}, v{vO+32+i}, v{vO+48+i}")
    for i in range(16):
        a(f"v_add_f32 v{vO+i}, v{vO+i}, v{vO+32+i}")
    a("s_lshl_b32 s59, s3, 13")
    a("s_mov_b32 s62, 0")
    a(f"v_mov_b32 v{vX}, s16")
    a("s_cmp_eq_u32 s17, 0")
    a("s_cbranch_scc1 L_roleA")
    for i in range(4):
        a(f"buffer_store_dwordx4 {r(vO+4*i,4)}, v7, s[36:39], s59 offen offset:{1024*i} sc1")
    a("s_add_u32 s59, s59, 4096")
    a(f"buffer_store_dwordx4 {r(vS,4)}, v7, s[36:39], s59 offen sc1")
    a("s_waitcnt vmcnt(0)")
    a("s_barrier")
    a("s_cmp_lg_u32 s3, 0")
    a("s_cbranch_scc1 L_end")
    a(f"v_mov_b32 v{vX+1}, 1")
    a("s_mov_b64 exec, 1")
    a(f"global_store_byte v{vX}, v{vX+1}, s[12:13] sc1")
    a("s_endpgm")
    lab("L_roleA")
    a(f"global_load_ubyte v{vX+1}, v{vX}, s[12:13] sc1")
    a("s_waitcnt vmcnt(0)")
    a(f"v_readfirstlane_b32 s60, v{vX+1}")
    a("s_cmp_lg_u32 s60, 0")
    a("s_cbranch_scc1 L_got")
    a("s_sleep 1")
    a("s_add_u32 s62, s62, 1")
    a("s_cmp_lt_u32 s62, 0x40000")
    a("s_cbranch_scc1 L_roleA")
    lab("L_got")
    a("s_add_u32 s60, s59, 4096")
    a(f"buffer_load_dwordx4 {r(vS+4,4)}, v7, s[36:39], s60 offen sc1")
    for i in range(4):
        a(f"buffer_load_dwordx4 {r(vO+16+4*i,4)}, v7, s[36:39], s59 offen offset:{1024*i} sc1")
    a("s_lshl_b32 s61, s3, 11")
    a("s_waitcnt vmcnt(4)")
    for kk in range(2):
        mA, lA, mB, lB = vS+2*kk, vS+2*kk+1, vS+4+2*kk, vS+5+2*kk
        a(f"v_max_f32 v{vT0}, v{mA}, v{mB}")
        a(f"v_sub_f32 v{mA}, v{mA}, v{vT0}")
        a(f"v_sub_f32 v{mB}, v{mB}, v{vT0}")
        a(f"v_exp_f32 v{mA}, v{mA}")
        a(f"v_exp_f32 v{mB}, v{mB}")
        a("s_nop 0")
        a(f"v_mul_f32 v{lA}, v{lA}, v{mA}")
        a(f"v_fma_f32 v{lA}, v{lB}, v{mB}, v{lA}")
        a(f"v_rcp_f32 v{lA}, v{lA}")
        a("s_nop 0")
        a(f"v_mul_f32 v{mA}, v{mA}, v{lA}")
        a(f"v_mul_f32 v{mB}, v{mB}, v{lA}")
    for i in range(16):
        a(f"v_mul_f32 v{vO+i}, v{vO+i}, v{vS+2*(i//8)}")
    a("s_waitcnt vmcnt(0)")
    for i in range(16):
        a(f"v_fma_f32 v{vO+i}, v{vO+16+i}, v{vS+4+2*(i//8)}, v{vO+i}")
    for i in range(8):
        a(f"v_cvt_pk_bf16_f32 v{vO+32+i}, v{vO+2*i}, v{vO+2*i+1}")
    a(f"buffer_store_dwordx4 {r(vO+32,4)}, v7, s[32:35], s61 offen")
    a(f"buffer_store_dwordx4 {r(vO+36,4)}, v7, s[32:35], s61 offen offset:1024")
    lab("L_end")
    a("s_endpgm")
    body = "\n".join(L)
    src = HEADER + f"; @launch grid=(256,1,1) block=(256,1,1) lds={LDS}\n" + f""".amdgcn_target "amdgcn-amd-amdhsa--gfx950"
.text
.globl {name}
.p2align 8
.type {name},@function
{name}:
{body}
.section .rodata,"a"
.p2align 6
.amdhsa_kernel {name}
  .amdhsa_next_free_vgpr {NV}
  .amdhsa_next_free_sgpr 80
  .amdhsa_accum_offset {NV}
  .amdhsa_group_segment_fixed_size 0
  .amdhsa_kernarg_size 48
  .amdhsa_user_sgpr_count 2
  .amdhsa_user_sgpr_kernarg_segment_ptr 1
  .amdhsa_system_sgpr_workgroup_id_x 1
.end_amdhsa_kernel
"""
    return src

if __name__ == '__main__':
    out = sys.argv[1]
    kw = {}
    for x in sys.argv[2:]:
        k, v = x.split('=')
        kw[k] = int(v) if v.lstrip('-').isdigit() else v
    if kw.get('POL') == 'd': kw['POL'] = ''
    open(out, 'w').write(gen(**kw))
```

```python
import sys, math, subprocess, struct

def f2u(x): return struct.unpack('<I', struct.pack('<f', x))[0]

HEADER = """; Kernarg layout for this problem (48 bytes, ptrs only, base s[0:1]):
"""
NAME = "standalone__gqa_softmax__sampling_kernel"

def gen(TA=8, POL="nt", ORDER=4, name=NAME, PAD=0):
    TB = 16 - TA
    L = []
    def a(s): L.append("    " + s)
    def lab(s): L.append(s + ":")
    QBASE, MBUF, LBUF, LDS = 131072, 139264, 139776, 140288
    C = f2u(128 ** -0.5 * math.log2(math.e))
    vQ = 8
    vS = 40
    vP = 56
    vO = 64
    vK = 128
    vV = 160
    vKA = 192
    vVA = 200
    vKO = 204
    vVO = 208
    vM, vL, vAL, vT0, vT1, vT2, vT3 = 209, 210, 211, 212, 213, 214, 215
    vLN = 216
    vX = 220
    NV = 240
    woff = 8192 if ORDER == 8 else 4096
    hoff = 4096 if ORDER == 8 else 16384
    def r(b, n): return f"v[{b}:{b+n-1}]"

    a(f"s_cmp_ge_u32 s2, 256")
    a(f"s_cbranch_scc1 L_end2")
    if PAD: a("s_memrealtime s[64:65]")
    a("s_load_dwordx8 s[4:11], s[0:1], 0")
    a("s_load_dwordx4 s[12:15], s[0:1], 32")
    a("v_lshrrev_b32 v1, 6, v0")
    a(f"v_and_b32 v{vLN}, 63, v0")
    a("v_readfirstlane_b32 s3, v1")
    a("s_lshr_b32 s16, s2, 1")
    a("s_and_b32 s17, s2, 1")
    a(f"v_lshrrev_b32 v2, 4, v{vLN}")
    a(f"v_and_b32 v3, 15, v{vLN}")
    a("s_cmp_eq_u32 s17, 0")
    a(f"s_cselect_b32 s18, {TA}, {TB}")
    a(f"s_cselect_b32 s48, 0, {TA*32768}")
    a("s_lshl_b32 s47, s18, 15")
    a("s_lshl_b32 s49, s16, 19")
    a("s_add_u32 s48, s48, s49")
    a(f"s_mul_i32 s50, s3, {woff}")
    a(f"v_lshlrev_b32 v4, 8, v2")
    a(f"v_add_u32 v4, s50, v4")
    for j in range(4):
        a(f"v_add_u32 v5, {4*j}, v2")
        a(f"v_xor_b32 v5, v5, v3")
        a(f"v_lshl_add_u32 v{vKO+j}, v5, 4, v4")
    a(f"v_lshlrev_b32 v5, 2, v2")
    a(f"v_xor_b32 v5, v5, v3")
    a(f"v_lshl_add_u32 v{vVO}, v5, 4, v4")
    a("s_lshl_b32 s51, s3, 3")
    a("v_add_u32 v6, s51, v2")
    a("v_lshlrev_b32 v4, 8, v6")
    a("v_and_b32 v5, 15, v6")
    a("v_xor_b32 v5, v5, v3")
    a(f"v_lshl_add_u32 v{vX}, v5, 4, v4")
    a("v_add_u32 v5, 4, v6")
    a("v_and_b32 v5, 15, v5")
    a("v_xor_b32 v5, v5, v3")
    a(f"v_lshl_add_u32 v{vX+1}, v5, 4, v4")
    a("s_lshl_b32 s44, s3, 15")
    a("s_add_u32 s45, s44, 16384")
    a("s_lshl_b32 s52, s3, 11")
    a(f"s_add_u32 s52, s52, {QBASE}")
    a("s_lshl_b32 s53, s16, 13")
    a("s_mov_b32 s23, 0x20000")
    a("s_mov_b32 s27, 0x20000")
    a("s_mov_b32 s31, 0x20000")
    a("s_mov_b32 s30, 8192")
    a("s_mov_b32 s40, 0")
    a("s_mov_b32 s41, 0")
    a("s_mov_b32 m0, s52")
    a("s_waitcnt lgkmcnt(0)")
    a("s_add_u32 s28, s4, s53")
    a("s_addc_u32 s29, s5, 0")
    a("s_add_u32 s20, s6, s48")
    a("s_addc_u32 s21, s7, 0")
    a("s_add_u32 s24, s8, s48")
    a("s_addc_u32 s25, s9, 0")
    a(f"buffer_load_dwordx4 v{vX}, s[28:31], 0 offen lds")
    a(f"buffer_load_dwordx4 v{vX+1}, s[28:31], 0 offen offset:1024 lds")

    def dma(kind):
        srd, so, slot, nrec = (("s[20:23]", "s40", "s44", "s22") if kind == 'k' else ("s[24:27]", "s41", "s45", "s26"))
        a(f"s_cmp_lt_u32 {so}, s47")
        a(f"s_cselect_b32 {nrec}, s47, 0")
        a(f"s_mov_b32 m0, {slot}")
        a(f"s_add_u32 s42, {so}, {hoff}")
        for j in range(4):
            vo = vKO + j if kind == 'k' else vVO
            a(f"buffer_load_dwordx4 v{vo}, {srd}, {so} offen offset:{j*1024} {POL} lds")
        a(f"s_add_u32 m0, {slot}, 4096")
        a(f"s_add_u32 {so}, {so}, 32768")
        for j in range(4):
            vo = vKO + j if kind == 'k' else vVO
            a(f"buffer_load_dwordx4 v{vo}, {srd}, s42 offen offset:{j*1024} {POL} lds")
        a(f"s_xor_b32 {slot}, {slot}, 8192")
    dma('k'); dma('k'); dma('v')
    a(f"v_and_b32 v2, 31, v{vLN}")
    a(f"v_lshrrev_b32 v3, 5, v{vLN}")
    a("v_and_b32 v4, 15, v2")
    a("v_xor_b32 v4, v4, v3")
    a("v_lshlrev_b32 v5, 8, v2")
    a(f"v_add_u32 v5, {QBASE}, v5")
    for m in range(8):
        a(f"v_xor_b32 v6, {2*m}, v4")
        a(f"v_lshl_add_u32 v{vKA+m}, v6, 4, v5")
    a(f"v_bfe_u32 v2, v{vLN}, 2, 2")
    a(f"v_and_b32 v4, 3, v{vLN}")
    a(f"v_bfe_u32 v5, v{vLN}, 4, 1")
    a("v_lshlrev_b32 v4, 3, v4")
    a("v_lshl_add_u32 v4, v5, 5, v4")
    a("v_lshl_add_u32 v5, v3, 2, v2")
    a("v_lshl_add_u32 v4, v5, 8, v4")
    a("s_lshl_b32 s54, s3, 15")
    a("s_add_u32 s55, s54, 16384")
    a("v_add_u32 v4, s55, v4")
    for db in range(4):
        a(f"v_xor_b32 v6, {db}, v2")
        a(f"v_lshl_add_u32 v{vVA+db}, v6, 6, v4")
    for i in range(64):
        a(f"v_mov_b32 v{vO+i}, 0")
    a(f"s_mov_b32 s46, {C:#x}")
    a(f"s_sub_u32 s56, s54, {QBASE}")
    a(f"s_sub_u32 s19, s18, 1")
    a("s_add_u32 s32, s10, s53")
    a("s_addc_u32 s33, s11, 0")
    a("s_mov_b32 s34, 8192")
    a("s_mov_b32 s35, 0x20000")
    a("s_lshl_b32 s57, s16, 15")
    a("s_add_u32 s36, s14, s57")
    a("s_addc_u32 s37, s15, 0")
    a("s_mov_b32 s38, 32768")
    a("s_mov_b32 s39, 0x20000")
    a("s_waitcnt vmcnt(24)")
    a("s_barrier")
    for m in range(8):
        a(f"ds_read_b128 {r(vQ+4*m,4)}, v{vKA+m}")
    for m in range(8):
        a(f"v_add_u32 v{vKA+m}, s56, v{vKA+m}")

    def kread():
        for m in range(8):
            a(f"ds_read_b128 {r(vK+4*m,4)}, v{vKA+m}")
    def qk():
        for m in range(8):
            a(f"s_waitcnt lgkmcnt({7-m})")
            c = "0" if m == 0 else r(vS, 16)
            a(f"v_mfma_f32_32x32x16_bf16 {r(vS,16)}, {r(vK+4*m,4)}, {r(vQ+4*m,4)}, {c}")
    def ktoggle():
        for m in range(8):
            a(f"v_xor_b32 v{vKA+m}, 0x2000, v{vKA+m}")
    def tilemax():
        a(f"v_max3_f32 v{vT0}, v{vS}, v{vS+1}, v{vS+2}")
        a(f"v_max3_f32 v{vT1}, v{vS+3}, v{vS+4}, v{vS+5}")
        a(f"v_max3_f32 v{vT2}, v{vS+6}, v{vS+7}, v{vS+8}")
        a(f"v_max3_f32 v{vT3}, v{vS+9}, v{vS+10}, v{vS+11}")
        a(f"v_max3_f32 v{vT0}, v{vT0}, v{vS+12}, v{vS+13}")
        a(f"v_max3_f32 v{vT1}, v{vT1}, v{vS+14}, v{vS+15}")
        a(f"v_max3_f32 v{vT0}, v{vT0}, v{vT1}, v{vT2}")
        a(f"v_max_f32 v{vT0}, v{vT0}, v{vT3}")
        a(f"v_mov_b32 v{vT1}, v{vT0}")
        a("s_nop 1")
        a(f"v_permlane32_swap_b32 v{vT0}, v{vT1}")
        a("s_nop 0")
        a(f"v_max_f32 v{vT0}, v{vT0}, v{vT1}")
        a(f"v_mul_f32 v{vT0}, s46, v{vT0}")
    def exps(first):
        if not first:
            a(f"v_sub_f32 v{vAL}, v{vM}, v{vT0}")
        a(f"v_mov_b32 v{vM}, v{vT0}")
        for i in range(16):
            a(f"v_fma_f32 v{vS+i}, v{vS+i}, s46, -v{vT0}")
        if not first:
            a(f"v_exp_f32 v{vAL}, v{vAL}")
        for i in range(16):
            a(f"v_exp_f32 v{vS+i}, v{vS+i}")
        a(f"v_add_f32 v{vT0}, v{vS}, v{vS+1}")
        a(f"v_add_f32 v{vT1}, v{vS+2}, v{vS+3}")
        a(f"v_add_f32 v{vT2}, v{vS+4}, v{vS+5}")
        a(f"v_add_f32 v{vT3}, v{vS+6}, v{vS+7}")
        for i in range(8):
            t = [vT0, vT1, vT2, vT3][i % 4]
            a(f"v_add_f32 v{t}, v{t}, v{vS+8+i}")
        a(f"v_add_f32 v{vT0}, v{vT0}, v{vT1}")
        a(f"v_add_f32 v{vT2}, v{vT2}, v{vT3}")
        if first:
            a(f"v_add_f32 v{vL}, v{vT0}, v{vT2}")
            a(f"v_mov_b32 v{vAL}, 1.0")
        else:
            a(f"v_add_f32 v{vT0}, v{vT0}, v{vT2}")
            a(f"v_fma_f32 v{vL}, v{vL}, v{vAL}, v{vT0}")
    def cvtp():
        for i in range(8):
            a(f"v_cvt_pk_bf16_f32 v{vP+i}, v{vS+2*i}, v{vS+2*i+1}")
    def oscale():
        for i in range(64):
            a(f"v_mul_f32 v{vO+i}, v{vAL}, v{vO+i}")
    def vread(s):
        for db in range(4):
            for u in (2*s, 2*s+1):
                a(f"ds_read_b64_tr_b16 {r(vV + s*16 + db*4 + (u&1)*2, 2)}, v{vVA+db} offset:{2048*u}")
    def pv(s, outstanding_after):
        for db in range(4):
            a(f"s_waitcnt lgkmcnt({outstanding_after + 6 - 2*db})")
            a(f"v_mfma_f32_32x32x16_bf16 {r(vO+16*db,16)}, {r(vV+s*16+db*4,4)}, {r(vP+4*s,4)}, {r(vO+16*db,16)}")
    def vtoggle():
        for db in range(4):
            a(f"v_xor_b32 v{vVA+db}, 0x2000, v{vVA+db}")

    a("s_waitcnt vmcnt(16) lgkmcnt(0)")
    kread(); qk()
    dma('k'); dma('v')
    ktoggle()
    tilemax()
    exps(True)
    cvtp()
    lab("L_loop")
    a("s_waitcnt vmcnt(24)")
    kread()
    oscale()
    qk()
    dma('k')
    ktoggle()
    tilemax()
    a(f"v_max_f32 v{vT0}, v{vT0}, v{vM}")
    a("s_cmp_lg_u32 s19, 1")
    a("s_cbranch_scc1 L_noxchg")
    a(f"v_and_b32 v{vX}, 31, v{vLN}")
    a(f"v_lshlrev_b32 v{vX}, 4, v{vX}")
    a(f"v_add_u32 v{vX}, {MBUF}, v{vX}")
    a(f"s_lshl_b32 s58, s3, 2")
    a(f"v_add_u32 v{vX+1}, s58, v{vX}")
    a(f"ds_write_b32 v{vX+1}, v{vT0}")
    a("s_waitcnt lgkmcnt(0)")
    a("s_barrier")
    a(f"ds_read_b128 {r(vX+4,4)}, v{vX}")
    a("s_waitcnt lgkmcnt(0)")
    a(f"v_max3_f32 v{vT0}, v{vX+4}, v{vX+5}, v{vX+6}")
    a(f"v_max_f32 v{vT0}, v{vT0}, v{vX+7}")
    lab("L_noxchg")
    exps(False)
    a("s_waitcnt vmcnt(24)")
    vread(0); vread(1)
    pv(0, 8); pv(1, 0)
    dma('v')
    vtoggle()
    cvtp()
    a("s_sub_u32 s19, s19, 1")
    a("s_cmp_lg_u32 s19, 0")
    a("s_cbranch_scc1 L_loop")
    a(f"v_mov_b32 v{vT1}, v{vL}")
    a("s_nop 1")
    a(f"v_permlane32_swap_b32 v{vL}, v{vT1}")
    a("s_nop 0")
    a(f"v_add_f32 v{vL}, v{vL}, v{vT1}")
    a(f"ds_write_b32 v{vX+1}, v{vL} offset:{LBUF-MBUF}")
    oscale()
    a(f"v_and_b32 v2, 31, v{vLN}")
    a(f"v_lshrrev_b32 v3, 5, v{vLN}")
    a("v_and_b32 v4, 7, v2")
    a("v_xor_b32 v4, v4, v3")
    a("v_lshlrev_b32 v5, 9, v2")
    a("v_add_u32 v5, s54, v5")
    for g in range(4):
        a(f"v_xor_b32 v6, {2*g}, v4")
        a(f"v_lshl_add_u32 v{vX+8+g}, v6, 4, v5")
    a(f"v_lshrrev_b32 v2, 4, v{vLN}")
    a("v_add_u32 v2, s51, v2")
    a(f"v_and_b32 v3, 15, v{vLN}")
    a("v_lshlrev_b32 v3, 1, v3")
    for kk in range(2):
        a(f"v_add_u32 v4, {4*kk}, v2")
        a("v_and_b32 v5, 7, v4")
        a("v_xor_b32 v5, v5, v3")
        a("v_lshlrev_b32 v6, 9, v4")
        a(f"v_lshl_add_u32 v{vX+12+2*kk}, v5, 4, v6")
        a(f"v_xor_b32 v{vX+13+2*kk}, 16, v{vX+12+2*kk}")
    for i in range(4):
        a(f"v_add_u32 v{vX+16+i}, 0x10000, v{vX+12+i}")
    a("v_lshlrev_b32 v2, 4, v2")
    a(f"v_add_u32 v2, {MBUF}, v2")
    a("s_waitcnt lgkmcnt(0)")
    a("s_barrier")
    a(f"ds_read_b128 {r(vK,4)}, v2")
    a(f"ds_read_b128 {r(vK+4,4)}, v2 offset:64")
    a(f"ds_read_b128 {r(vK+8,4)}, v2 offset:{LBUF-MBUF}")
    a(f"ds_read_b128 {r(vK+12,4)}, v2 offset:{LBUF-MBUF+64}")
    a(f"v_lshlrev_b32 v7, 4, v{vLN}")
    a("s_waitcnt lgkmcnt(0)")
    a(f"v_max3_f32 v{vS}, v{vK}, v{vK+1}, v{vK+2}")
    a(f"v_max3_f32 v{vS+2}, v{vK+4}, v{vK+5}, v{vK+6}")
    a(f"v_max_f32 v{vS}, v{vS}, v{vK+3}")
    a(f"v_max_f32 v{vS+2}, v{vS+2}, v{vK+7}")
    a(f"v_add_f32 v{vS+1}, v{vK+8}, v{vK+9}")
    a(f"v_add_f32 v{vS+3}, v{vK+12}, v{vK+13}")
    a(f"v_add_f32 v{vS+1}, v{vS+1}, v{vK+10}")
    a(f"v_add_f32 v{vS+3}, v{vS+3}, v{vK+14}")
    a(f"v_add_f32 v{vS+1}, v{vS+1}, v{vK+11}")
    a(f"v_add_f32 v{vS+3}, v{vS+3}, v{vK+15}")
    a("s_waitcnt vmcnt(20)")
    vread(0)
    a("s_waitcnt vmcnt(16)")
    vread(1)
    pv(0, 8); pv(1, 0)
    a("s_waitcnt vmcnt(0)")
    a("s_nop 7")
    for db in range(4):
        if db == 3: a("s_nop 0")
        for g in range(4):
            a(f"ds_write_b128 v{vX+8+g}, {r(vO+16*db+4*g,4)} offset:{128*db}")
    a("s_waitcnt lgkmcnt(0)")
    a("s_barrier")
    for src in range(4):
        for i in range(4):
            ad = vX + 12 + i + (4 if src >= 2 else 0)
            a(f"ds_read_b128 {r(vO+16*src+4*i,4)}, v{ad} offset:{32768*(src&1)}")
    a("s_waitcnt lgkmcnt(8)")
    for i in range(16):
        a(f"v_add_f32 v{vO+i}, v{vO+i}, v{vO+16+i}")
    a("s_waitcnt lgkmcnt(0)")
    for i in range(16):
        a(f"v_add_f32 v{vO+32+i}, v{vO+32+i}, v{vO+48+i}")
    for i in range(16):
        a(f"v_add_f32 v{vO+i}, v{vO+i}, v{vO+32+i}")
    a("s_lshl_b32 s59, s3, 13")
    a("s_mov_b32 s62, 0")
    a(f"v_mov_b32 v{vX}, s16")
    a("s_cmp_eq_u32 s17, 0")
    a("s_cbranch_scc1 L_roleA")
    for i in range(4):
        a(f"buffer_store_dwordx4 {r(vO+4*i,4)}, v7, s[36:39], s59 offen offset:{1024*i} sc1")
    a("s_add_u32 s59, s59, 4096")
    a(f"buffer_store_dwordx4 {r(vS,4)}, v7, s[36:39], s59 offen sc1")
    a("s_waitcnt vmcnt(0)")
    a("s_barrier")
    a("s_cmp_lg_u32 s3, 0")
    a("s_cbranch_scc1 L_end")
    a(f"v_mov_b32 v{vX+1}, 1")
    a("s_mov_b64 exec, 1")
    a(f"global_store_byte v{vX}, v{vX+1}, s[12:13] sc1")
    a("s_endpgm")
    lab("L_roleA")
    a(f"global_load_ubyte v{vX+1}, v{vX}, s[12:13] sc1")
    a("s_waitcnt vmcnt(0)")
    a(f"v_readfirstlane_b32 s60, v{vX+1}")
    a("s_cmp_lg_u32 s60, 0")
    a("s_cbranch_scc1 L_got")
    a("s_sleep 1")
    a("s_add_u32 s62, s62, 1")
    a("s_cmp_lt_u32 s62, 0x40000")
    a("s_cbranch_scc1 L_roleA")
    lab("L_got")
    a("s_add_u32 s60, s59, 4096")
    a(f"buffer_load_dwordx4 {r(vS+4,4)}, v7, s[36:39], s60 offen sc1")
    for i in range(4):
        a(f"buffer_load_dwordx4 {r(vO+16+4*i,4)}, v7, s[36:39], s59 offen offset:{1024*i} sc1")
    a("s_lshl_b32 s61, s3, 11")
    a("s_waitcnt vmcnt(4)")
    for kk in range(2):
        mA, lA, mB, lB = vS+2*kk, vS+2*kk+1, vS+4+2*kk, vS+5+2*kk
        a(f"v_max_f32 v{vT0}, v{mA}, v{mB}")
        a(f"v_sub_f32 v{mA}, v{mA}, v{vT0}")
        a(f"v_sub_f32 v{mB}, v{mB}, v{vT0}")
        a(f"v_exp_f32 v{mA}, v{mA}")
        a(f"v_exp_f32 v{mB}, v{mB}")
        a("s_nop 0")
        a(f"v_mul_f32 v{lA}, v{lA}, v{mA}")
        a(f"v_fma_f32 v{lA}, v{lB}, v{mB}, v{lA}")
        a(f"v_rcp_f32 v{lA}, v{lA}")
        a("s_nop 0")
        a(f"v_mul_f32 v{mA}, v{mA}, v{lA}")
        a(f"v_mul_f32 v{mB}, v{mB}, v{lA}")
    for i in range(16):
        a(f"v_mul_f32 v{vO+i}, v{vO+i}, v{vS+2*(i//8)}")
    a("s_waitcnt vmcnt(0)")
    for i in range(16):
        a(f"v_fma_f32 v{vO+i}, v{vO+16+i}, v{vS+4+2*(i//8)}, v{vO+i}")
    for i in range(8):
        a(f"v_cvt_pk_bf16_f32 v{vO+32+i}, v{vO+2*i}, v{vO+2*i+1}")
    a(f"buffer_store_dwordx4 {r(vO+32,4)}, v7, s[32:35], s61 offen")
    a(f"buffer_store_dwordx4 {r(vO+36,4)}, v7, s[32:35], s61 offen offset:1024")
    lab("L_end")
    if PAD:
        a("s_memrealtime s[66:67]")
        a("s_waitcnt lgkmcnt(0)")
        a("s_sub_u32 s66, s66, s64")
        a(f"s_cmp_lt_u32 s66, {PAD*100}")
        a("s_cbranch_scc1 L_end")
    lab("L_end2")
    a("s_endpgm")
    body = "\n".join(L)
    src = HEADER + f"; @launch grid=(256,1,1) block=(256,1,1) lds={LDS}\n" + f""".amdgcn_target "amdgcn-amd-amdhsa--gfx950"
.text
.globl {name}
.p2align 8
.type {name},@function
{name}:
{body}
.section .rodata,"a"
.p2align 6
.amdhsa_kernel {name}
  .amdhsa_next_free_vgpr {NV}
  .amdhsa_next_free_sgpr 80
  .amdhsa_accum_offset {NV}
  .amdhsa_group_segment_fixed_size 0
  .amdhsa_kernarg_size 48
  .amdhsa_user_sgpr_count 2
  .amdhsa_user_sgpr_kernarg_segment_ptr 1
  .amdhsa_system_sgpr_workgroup_id_x 1
.end_amdhsa_kernel
"""
    return src

if __name__ == '__main__':
    out = sys.argv[1]
    kw = {}
    for x in sys.argv[2:]:
        k, v = x.split('=')
        kw[k] = int(v) if v.lstrip('-').isdigit() else v
    if kw.get('POL') == 'd': kw['POL'] = ''
    open(out, 'w').write(gen(**kw))
```

```python
import sys, math, subprocess, struct

def f2u(x): return struct.unpack('<I', struct.pack('<f', x))[0]

HEADER = """; Kernarg layout for this problem (48 bytes, ptrs only, base s[0:1]):
"""
NAME = "standalone__gqa_softmax__sampling_kernel"

def gen(TA=8, POL="nt", ORDER=4, name=NAME, PAD=0, STAT=0, OPOL="", PF=0, ROLE=0):
    TB = 16 - TA
    L = []
    def a(s): L.append("    " + s)
    def lab(s): L.append(s + ":")
    QBASE, MBUF, LBUF, LDS = 131072, 139264, 139776, 140288
    C = f2u(128 ** -0.5 * math.log2(math.e))
    vQ = 8
    vS = 40
    vP = 56
    vO = 64
    vK = 128
    vV = 160
    vKA = 192
    vVA = 200
    vKO = 204
    vVO = 208
    vM, vL, vAL, vT0, vT1, vT2, vT3 = 209, 210, 211, 212, 213, 214, 215
    vLN = 216
    vX = 220
    NV = 240
    woff = 8192 if ORDER == 8 else 4096
    hoff = 4096 if ORDER == 8 else 16384
    def r(b, n): return f"v[{b}:{b+n-1}]"

    a(f"s_cmp_ge_u32 s2, 256")
    a(f"s_cbranch_scc1 L_end2")
    if PAD or STAT: a("s_memrealtime s[64:65]")
    a("s_load_dwordx8 s[4:11], s[0:1], 0")
    a("s_load_dwordx4 s[12:15], s[0:1], 32")
    a("v_lshrrev_b32 v1, 6, v0")
    a(f"v_and_b32 v{vLN}, 63, v0")
    a("v_readfirstlane_b32 s3, v1")
    if ROLE == 0:
        a("s_lshr_b32 s16, s2, 1")
        a("s_and_b32 s17, s2, 1")
    elif ROLE == 1:
        a("s_lshr_b32 s16, s2, 1")
        a("s_lshr_b32 s17, s2, 3")
        a("s_xor_b32 s17, s17, s2")
        a("s_and_b32 s17, s17, 1")
    elif ROLE == 2:
        a("s_lshr_b32 s16, s2, 4")
        a("s_lshl_b32 s16, s16, 3")
        a("s_and_b32 s17, s2, 7")
        a("s_or_b32 s16, s16, s17")
        a("s_bfe_u32 s17, s2, 0x10003")
    elif ROLE == 3:
        a("s_lshr_b32 s16, s2, 1")
        a("s_and_b32 s17, s2, 1")
        a("s_xor_b32 s17, s17, 1")
    a(f"v_lshrrev_b32 v2, 4, v{vLN}")
    a(f"v_and_b32 v3, 15, v{vLN}")
    a("s_cmp_eq_u32 s17, 0")
    a(f"s_cselect_b32 s18, {TA}, {TB}")
    a(f"s_cselect_b32 s48, 0, {TA*32768}")
    a("s_lshl_b32 s47, s18, 15")
    a("s_lshl_b32 s49, s16, 19")
    a("s_add_u32 s48, s48, s49")
    a(f"s_mul_i32 s50, s3, {woff}")
    a(f"v_lshlrev_b32 v4, 8, v2")
    a(f"v_add_u32 v4, s50, v4")
    for j in range(4):
        a(f"v_add_u32 v5, {4*j}, v2")
        a(f"v_xor_b32 v5, v5, v3")
        a(f"v_lshl_add_u32 v{vKO+j}, v5, 4, v4")
    a(f"v_lshlrev_b32 v5, 2, v2")
    a(f"v_xor_b32 v5, v5, v3")
    a(f"v_lshl_add_u32 v{vVO}, v5, 4, v4")
    a("s_lshl_b32 s51, s3, 3")
    a("v_add_u32 v6, s51, v2")
    a("v_lshlrev_b32 v4, 8, v6")
    a("v_and_b32 v5, 15, v6")
    a("v_xor_b32 v5, v5, v3")
    a(f"v_lshl_add_u32 v{vX}, v5, 4, v4")
    a("v_add_u32 v5, 4, v6")
    a("v_and_b32 v5, 15, v5")
    a("v_xor_b32 v5, v5, v3")
    a(f"v_lshl_add_u32 v{vX+1}, v5, 4, v4")
    a("s_lshl_b32 s44, s3, 15")
    a("s_add_u32 s45, s44, 16384")
    a("s_lshl_b32 s52, s3, 11")
    a(f"s_add_u32 s52, s52, {QBASE}")
    a("s_lshl_b32 s53, s16, 13")
    a("s_mov_b32 s23, 0x20000")
    a("s_mov_b32 s27, 0x20000")
    a("s_mov_b32 s31, 0x20000")
    a("s_mov_b32 s30, 8192")
    a("s_mov_b32 s40, 0")
    a("s_mov_b32 s41, 0")
    a("s_mov_b32 m0, s52")
    a("s_waitcnt lgkmcnt(0)")
    a("s_add_u32 s28, s4, s53")
    a("s_addc_u32 s29, s5, 0")
    a("s_add_u32 s20, s6, s48")
    a("s_addc_u32 s21, s7, 0")
    a("s_add_u32 s24, s8, s48")
    a("s_addc_u32 s25, s9, 0")
    a(f"buffer_load_dwordx4 v{vX}, s[28:31], 0 offen lds")
    a(f"buffer_load_dwordx4 v{vX+1}, s[28:31], 0 offen offset:1024 lds")

    def dma(kind):
        srd, so, slot, nrec = (("s[20:23]", "s40", "s44", "s22") if kind == 'k' else ("s[24:27]", "s41", "s45", "s26"))
        a(f"s_cmp_lt_u32 {so}, s47")
        a(f"s_cselect_b32 {nrec}, s47, 0")
        a(f"s_mov_b32 m0, {slot}")
        a(f"s_add_u32 s42, {so}, {hoff}")
        for j in range(4):
            vo = vKO + j if kind == 'k' else vVO
            a(f"buffer_load_dwordx4 v{vo}, {srd}, {so} offen offset:{j*1024} {POL} lds")
        a(f"s_add_u32 m0, {slot}, 4096")
        a(f"s_add_u32 {so}, {so}, 32768")
        for j in range(4):
            vo = vKO + j if kind == 'k' else vVO
            a(f"buffer_load_dwordx4 v{vo}, {srd}, s42 offen offset:{j*1024} {POL} lds")
        a(f"s_xor_b32 {slot}, {slot}, 8192")
    if PF:
        a("s_getpc_b64 s[70:71]")
        a(f"v_lshlrev_b32 v1, 7, v{vLN}")
        a("s_and_b32 s70, s70, 0xffffff00")
        a(f"global_load_dword v{vX+2}, v1, s[70:71]")
    dma('k'); dma('k'); dma('v')
    a(f"v_and_b32 v2, 31, v{vLN}")
    a(f"v_lshrrev_b32 v3, 5, v{vLN}")
    a("v_and_b32 v4, 15, v2")
    a("v_xor_b32 v4, v4, v3")
    a("v_lshlrev_b32 v5, 8, v2")
    a(f"v_add_u32 v5, {QBASE}, v5")
    for m in range(8):
        a(f"v_xor_b32 v6, {2*m}, v4")
        a(f"v_lshl_add_u32 v{vKA+m}, v6, 4, v5")
    a(f"v_bfe_u32 v2, v{vLN}, 2, 2")
    a(f"v_and_b32 v4, 3, v{vLN}")
    a(f"v_bfe_u32 v5, v{vLN}, 4, 1")
    a("v_lshlrev_b32 v4, 3, v4")
    a("v_lshl_add_u32 v4, v5, 5, v4")
    a("v_lshl_add_u32 v5, v3, 2, v2")
    a("v_lshl_add_u32 v4, v5, 8, v4")
    a("s_lshl_b32 s54, s3, 15")
    a("s_add_u32 s55, s54, 16384")
    a("v_add_u32 v4, s55, v4")
    for db in range(4):
        a(f"v_xor_b32 v6, {db}, v2")
        a(f"v_lshl_add_u32 v{vVA+db}, v6, 6, v4")
    for i in range(64):
        a(f"v_mov_b32 v{vO+i}, 0")
    a(f"s_mov_b32 s46, {C:#x}")
    a(f"s_sub_u32 s56, s54, {QBASE}")
    a(f"s_sub_u32 s19, s18, 1")
    a("s_add_u32 s32, s10, s53")
    a("s_addc_u32 s33, s11, 0")
    a("s_mov_b32 s34, 8192")
    a("s_mov_b32 s35, 0x20000")
    a("s_lshl_b32 s57, s16, 15")
    a("s_add_u32 s36, s14, s57")
    a("s_addc_u32 s37, s15, 0")
    a("s_mov_b32 s38, 32768")
    a("s_mov_b32 s39, 0x20000")
    a("s_waitcnt vmcnt(24)")
    a("s_barrier")
    for m in range(8):
        a(f"ds_read_b128 {r(vQ+4*m,4)}, v{vKA+m}")
    for m in range(8):
        a(f"v_add_u32 v{vKA+m}, s56, v{vKA+m}")

    def kread():
        for m in range(8):
            a(f"ds_read_b128 {r(vK+4*m,4)}, v{vKA+m}")
    def qk():
        for m in range(8):
            a(f"s_waitcnt lgkmcnt({7-m})")
            c = "0" if m == 0 else r(vS, 16)
            a(f"v_mfma_f32_32x32x16_bf16 {r(vS,16)}, {r(vK+4*m,4)}, {r(vQ+4*m,4)}, {c}")
    def ktoggle():
        for m in range(8):
            a(f"v_xor_b32 v{vKA+m}, 0x2000, v{vKA+m}")
    def tilemax():
        a(f"v_max3_f32 v{vT0}, v{vS}, v{vS+1}, v{vS+2}")
        a(f"v_max3_f32 v{vT1}, v{vS+3}, v{vS+4}, v{vS+5}")
        a(f"v_max3_f32 v{vT2}, v{vS+6}, v{vS+7}, v{vS+8}")
        a(f"v_max3_f32 v{vT3}, v{vS+9}, v{vS+10}, v{vS+11}")
        a(f"v_max3_f32 v{vT0}, v{vT0}, v{vS+12}, v{vS+13}")
        a(f"v_max3_f32 v{vT1}, v{vT1}, v{vS+14}, v{vS+15}")
        a(f"v_max3_f32 v{vT0}, v{vT0}, v{vT1}, v{vT2}")
        a(f"v_max_f32 v{vT0}, v{vT0}, v{vT3}")
        a(f"v_mov_b32 v{vT1}, v{vT0}")
        a("s_nop 1")
        a(f"v_permlane32_swap_b32 v{vT0}, v{vT1}")
        a("s_nop 0")
        a(f"v_max_f32 v{vT0}, v{vT0}, v{vT1}")
        a(f"v_mul_f32 v{vT0}, s46, v{vT0}")
    def exps(first):
        if not first:
            a(f"v_sub_f32 v{vAL}, v{vM}, v{vT0}")
        a(f"v_mov_b32 v{vM}, v{vT0}")
        for i in range(16):
            a(f"v_fma_f32 v{vS+i}, v{vS+i}, s46, -v{vT0}")
        if not first:
            a(f"v_exp_f32 v{vAL}, v{vAL}")
        for i in range(16):
            a(f"v_exp_f32 v{vS+i}, v{vS+i}")
        a(f"v_add_f32 v{vT0}, v{vS}, v{vS+1}")
        a(f"v_add_f32 v{vT1}, v{vS+2}, v{vS+3}")
        a(f"v_add_f32 v{vT2}, v{vS+4}, v{vS+5}")
        a(f"v_add_f32 v{vT3}, v{vS+6}, v{vS+7}")
        for i in range(8):
            t = [vT0, vT1, vT2, vT3][i % 4]
            a(f"v_add_f32 v{t}, v{t}, v{vS+8+i}")
        a(f"v_add_f32 v{vT0}, v{vT0}, v{vT1}")
        a(f"v_add_f32 v{vT2}, v{vT2}, v{vT3}")
        if first:
            a(f"v_add_f32 v{vL}, v{vT0}, v{vT2}")
            a(f"v_mov_b32 v{vAL}, 1.0")
        else:
            a(f"v_add_f32 v{vT0}, v{vT0}, v{vT2}")
            a(f"v_fma_f32 v{vL}, v{vL}, v{vAL}, v{vT0}")
    def cvtp():
        for i in range(8):
            a(f"v_cvt_pk_bf16_f32 v{vP+i}, v{vS+2*i}, v{vS+2*i+1}")
    def oscale():
        for i in range(64):
            a(f"v_mul_f32 v{vO+i}, v{vAL}, v{vO+i}")
    def vread(s):
        for db in range(4):
            for u in (2*s, 2*s+1):
                a(f"ds_read_b64_tr_b16 {r(vV + s*16 + db*4 + (u&1)*2, 2)}, v{vVA+db} offset:{2048*u}")
    def pv(s, outstanding_after):
        for db in range(4):
            a(f"s_waitcnt lgkmcnt({outstanding_after + 6 - 2*db})")
            a(f"v_mfma_f32_32x32x16_bf16 {r(vO+16*db,16)}, {r(vV+s*16+db*4,4)}, {r(vP+4*s,4)}, {r(vO+16*db,16)}")
    def vtoggle():
        for db in range(4):
            a(f"v_xor_b32 v{vVA+db}, 0x2000, v{vVA+db}")

    a("s_waitcnt vmcnt(16) lgkmcnt(0)")
    if STAT:
        a("s_memrealtime s[66:67]")
        a("s_waitcnt lgkmcnt(0)")
    kread(); qk()
    dma('k'); dma('v')
    ktoggle()
    tilemax()
    exps(True)
    cvtp()
    lab("L_loop")
    a("s_waitcnt vmcnt(24)")
    kread()
    oscale()
    qk()
    dma('k')
    ktoggle()
    tilemax()
    a(f"v_max_f32 v{vT0}, v{vT0}, v{vM}")
    a("s_cmp_lg_u32 s19, 1")
    a("s_cbranch_scc1 L_noxchg")
    a(f"v_and_b32 v{vX}, 31, v{vLN}")
    a(f"v_lshlrev_b32 v{vX}, 4, v{vX}")
    a(f"v_add_u32 v{vX}, {MBUF}, v{vX}")
    a(f"s_lshl_b32 s58, s3, 2")
    a(f"v_add_u32 v{vX+1}, s58, v{vX}")
    a(f"ds_write_b32 v{vX+1}, v{vT0}")
    a("s_waitcnt lgkmcnt(0)")
    a("s_barrier")
    a(f"ds_read_b128 {r(vX+4,4)}, v{vX}")
    a("s_waitcnt lgkmcnt(0)")
    a(f"v_max3_f32 v{vT0}, v{vX+4}, v{vX+5}, v{vX+6}")
    a(f"v_max_f32 v{vT0}, v{vT0}, v{vX+7}")
    lab("L_noxchg")
    exps(False)
    a("s_waitcnt vmcnt(24)")
    vread(0); vread(1)
    pv(0, 8); pv(1, 0)
    dma('v')
    vtoggle()
    cvtp()
    a("s_sub_u32 s19, s19, 1")
    a("s_cmp_lg_u32 s19, 0")
    a("s_cbranch_scc1 L_loop")
    if STAT:
        a("s_memrealtime s[68:69]")
        a("s_waitcnt lgkmcnt(0)")
    a(f"v_mov_b32 v{vT1}, v{vL}")
    a("s_nop 1")
    a(f"v_permlane32_swap_b32 v{vL}, v{vT1}")
    a("s_nop 0")
    a(f"v_add_f32 v{vL}, v{vL}, v{vT1}")
    a(f"ds_write_b32 v{vX+1}, v{vL} offset:{LBUF-MBUF}")
    oscale()
    a(f"v_and_b32 v2, 31, v{vLN}")
    a(f"v_lshrrev_b32 v3, 5, v{vLN}")
    a("v_and_b32 v4, 7, v2")
    a("v_xor_b32 v4, v4, v3")
    a("v_lshlrev_b32 v5, 9, v2")
    a("v_add_u32 v5, s54, v5")
    for g in range(4):
        a(f"v_xor_b32 v6, {2*g}, v4")
        a(f"v_lshl_add_u32 v{vX+8+g}, v6, 4, v5")
    a(f"v_lshrrev_b32 v2, 4, v{vLN}")
    a("v_add_u32 v2, s51, v2")
    a(f"v_and_b32 v3, 15, v{vLN}")
    a("v_lshlrev_b32 v3, 1, v3")
    for kk in range(2):
        a(f"v_add_u32 v4, {4*kk}, v2")
        a("v_and_b32 v5, 7, v4")
        a("v_xor_b32 v5, v5, v3")
        a("v_lshlrev_b32 v6, 9, v4")
        a(f"v_lshl_add_u32 v{vX+12+2*kk}, v5, 4, v6")
        a(f"v_xor_b32 v{vX+13+2*kk}, 16, v{vX+12+2*kk}")
    for i in range(4):
        a(f"v_add_u32 v{vX+16+i}, 0x10000, v{vX+12+i}")
    a("v_lshlrev_b32 v2, 4, v2")
    a(f"v_add_u32 v2, {MBUF}, v2")
    a("s_waitcnt lgkmcnt(0)")
    a("s_barrier")
    a(f"ds_read_b128 {r(vK,4)}, v2")
    a(f"ds_read_b128 {r(vK+4,4)}, v2 offset:64")
    a(f"ds_read_b128 {r(vK+8,4)}, v2 offset:{LBUF-MBUF}")
    a(f"ds_read_b128 {r(vK+12,4)}, v2 offset:{LBUF-MBUF+64}")
    a(f"v_lshlrev_b32 v7, 4, v{vLN}")
    a("s_waitcnt lgkmcnt(0)")
    a(f"v_max3_f32 v{vS}, v{vK}, v{vK+1}, v{vK+2}")
    a(f"v_max3_f32 v{vS+2}, v{vK+4}, v{vK+5}, v{vK+6}")
    a(f"v_max_f32 v{vS}, v{vS}, v{vK+3}")
    a(f"v_max_f32 v{vS+2}, v{vS+2}, v{vK+7}")
    a(f"v_add_f32 v{vS+1}, v{vK+8}, v{vK+9}")
    a(f"v_add_f32 v{vS+3}, v{vK+12}, v{vK+13}")
    a(f"v_add_f32 v{vS+1}, v{vS+1}, v{vK+10}")
    a(f"v_add_f32 v{vS+3}, v{vS+3}, v{vK+14}")
    a(f"v_add_f32 v{vS+1}, v{vS+1}, v{vK+11}")
    a(f"v_add_f32 v{vS+3}, v{vS+3}, v{vK+15}")
    a("s_waitcnt vmcnt(20)")
    vread(0)
    a("s_waitcnt vmcnt(16)")
    vread(1)
    pv(0, 8); pv(1, 0)
    a("s_waitcnt vmcnt(0)")
    if STAT:
        a("s_memrealtime s[72:73]")
        a("s_waitcnt lgkmcnt(0)")
    a("s_nop 7")
    for db in range(4):
        if db == 3: a("s_nop 0")
        for g in range(4):
            a(f"ds_write_b128 v{vX+8+g}, {r(vO+16*db+4*g,4)} offset:{128*db}")
    a("s_waitcnt lgkmcnt(0)")
    a("s_barrier")
    for src in range(4):
        for i in range(4):
            ad = vX + 12 + i + (4 if src >= 2 else 0)
            a(f"ds_read_b128 {r(vO+16*src+4*i,4)}, v{ad} offset:{32768*(src&1)}")
    a("s_waitcnt lgkmcnt(8)")
    for i in range(16):
        a(f"v_add_f32 v{vO+i}, v{vO+i}, v{vO+16+i}")
    a("s_waitcnt lgkmcnt(0)")
    for i in range(16):
        a(f"v_add_f32 v{vO+32+i}, v{vO+32+i}, v{vO+48+i}")
    for i in range(16):
        a(f"v_add_f32 v{vO+i}, v{vO+i}, v{vO+32+i}")
    a("s_lshl_b32 s59, s3, 13")
    a("s_mov_b32 s62, 0")
    a("s_add_u32 s63, s16, 128")
    a(f"v_mov_b32 v{vX}, s63")
    a("s_cmp_eq_u32 s17, 0")
    a("s_cbranch_scc1 L_roleA")
    for i in range(4):
        a(f"buffer_store_dwordx4 {r(vO+4*i,4)}, v7, s[36:39], s59 offen offset:{1024*i} sc1")
    a("s_add_u32 s59, s59, 4096")
    a(f"buffer_store_dwordx4 {r(vS,4)}, v7, s[36:39], s59 offen sc1")
    a("s_waitcnt vmcnt(0)")
    a("s_barrier")
    a("s_cmp_lg_u32 s3, 0")
    a("s_cbranch_scc1 L_end")
    a(f"v_mov_b32 v{vX+1}, 1")
    a("s_mov_b64 exec, 1")
    a(f"global_store_byte v{vX}, v{vX+1}, s[12:13] sc1")
    a("s_branch L_end")
    lab("L_roleA")
    a(f"global_load_ubyte v{vX+1}, v{vX}, s[12:13] sc1")
    a("s_waitcnt vmcnt(0)")
    a(f"v_readfirstlane_b32 s60, v{vX+1}")
    a("s_cmp_lg_u32 s60, 0")
    a("s_cbranch_scc1 L_got")
    a("s_sleep 1")
    a("s_add_u32 s62, s62, 1")
    a("s_cmp_lt_u32 s62, 0x40000")
    a("s_cbranch_scc1 L_roleA")
    lab("L_got")
    a("s_add_u32 s60, s59, 4096")
    a(f"buffer_load_dwordx4 {r(vS+4,4)}, v7, s[36:39], s60 offen sc1")
    for i in range(4):
        a(f"buffer_load_dwordx4 {r(vO+16+4*i,4)}, v7, s[36:39], s59 offen offset:{1024*i} sc1")
    a("s_lshl_b32 s61, s3, 11")
    a("s_waitcnt vmcnt(4)")
    for kk in range(2):
        mA, lA, mB, lB = vS+2*kk, vS+2*kk+1, vS+4+2*kk, vS+5+2*kk
        a(f"v_max_f32 v{vT0}, v{mA}, v{mB}")
        a(f"v_sub_f32 v{mA}, v{mA}, v{vT0}")
        a(f"v_sub_f32 v{mB}, v{mB}, v{vT0}")
        a(f"v_exp_f32 v{mA}, v{mA}")
        a(f"v_exp_f32 v{mB}, v{mB}")
        a("s_nop 0")
        a(f"v_mul_f32 v{lA}, v{lA}, v{mA}")
        a(f"v_fma_f32 v{lA}, v{lB}, v{mB}, v{lA}")
        a(f"v_rcp_f32 v{lA}, v{lA}")
        a("s_nop 0")
        a(f"v_mul_f32 v{mA}, v{mA}, v{lA}")
        a(f"v_mul_f32 v{mB}, v{mB}, v{lA}")
    for i in range(16):
        a(f"v_mul_f32 v{vO+i}, v{vO+i}, v{vS+2*(i//8)}")
    a("s_waitcnt vmcnt(0)")
    for i in range(16):
        a(f"v_fma_f32 v{vO+i}, v{vO+16+i}, v{vS+4+2*(i//8)}, v{vO+i}")
    for i in range(8):
        a(f"v_cvt_pk_bf16_f32 v{vO+32+i}, v{vO+2*i}, v{vO+2*i+1}")
    a(f"buffer_store_dwordx4 {r(vO+32,4)}, v7, s[32:35], s61 offen {OPOL}")
    a(f"buffer_store_dwordx4 {r(vO+36,4)}, v7, s[32:35], s61 offen offset:1024 {OPOL}")
    lab("L_end")
    if STAT:
        a("s_waitcnt vmcnt(0)")
        a("s_memrealtime s[74:75]")
        a("s_waitcnt lgkmcnt(0)")
        a("s_mov_b64 exec, 1")
        a("v_mov_b32 v0, 0")
        def st(op, idx, expr):
            for e in expr: a(e)
            a("v_mov_b32 v1, s76")
            a(f"global_atomic_{op} v0, v1, s[12:13] offset:{idx*4}")
        st("umax", 0, ["s_not_b32 s76, s64"])
        st("umax", 1, ["s_mov_b32 s76, s64"])
        st("umax", 2, ["s_mov_b32 s76, s74"])
        st("umax", 3, ["s_sub_u32 s76, s66, s64"])
        st("add", 4, [])
        st("umax", 5, ["s_sub_u32 s76, s68, s64"])
        st("add", 6, [])
        st("umax", 7, ["s_sub_u32 s76, s72, s64"])
        st("add", 8, [])
        st("umax", 9, ["s_sub_u32 s76, s74, s64"])
        st("add", 10, [])
        st("add", 11, ["s_mov_b32 s76, s62"])
        st("umax", 12, ["s_sub_u32 s76, s74, s72"])
        st("add", 13, [])
        st("umax", 14, ["s_mov_b32 s76, s72"])
    if PAD:
        a("s_memrealtime s[66:67]")
        a("s_waitcnt lgkmcnt(0)")
        a("s_sub_u32 s66, s66, s64")
        a(f"s_cmp_lt_u32 s66, {PAD*100}")
        a("s_cbranch_scc1 L_end")
    lab("L_end2")
    a("s_endpgm")
    body = "\n".join(L)
    src = HEADER + f"; @launch grid=(256,1,1) block=(256,1,1) lds={LDS}\n" + f""".amdgcn_target "amdgcn-amd-amdhsa--gfx950"
.text
.globl {name}
.p2align 8
.type {name},@function
{name}:
{body}
.section .rodata,"a"
.p2align 6
.amdhsa_kernel {name}
  .amdhsa_next_free_vgpr {NV}
  .amdhsa_next_free_sgpr 80
  .amdhsa_accum_offset {NV}
  .amdhsa_group_segment_fixed_size 0
  .amdhsa_kernarg_size 48
  .amdhsa_user_sgpr_count 2
  .amdhsa_user_sgpr_kernarg_segment_ptr 1
  .amdhsa_system_sgpr_workgroup_id_x 1
.end_amdhsa_kernel
"""
    return src

if __name__ == '__main__':
    out = sys.argv[1]
    kw = {}
    for x in sys.argv[2:]:
        k, v = x.split('=')
        kw[k] = int(v) if v.lstrip('-').isdigit() else v
    if kw.get('POL') == 'd': kw['POL'] = ''
    if 'OPOL' in kw: kw['OPOL'] = kw['OPOL'].replace('_',' ')
    open(out, 'w').write(gen(**kw))
```

```python
import sys, math, struct

def f2u(x): return struct.unpack('<I', struct.pack('<f', x))[0]

HEADER = """; Kernarg layout for this problem (48 bytes, ptrs only, base s[0:1]):
"""
NAME = "standalone__gqa_softmax__sampling_kernel"

def gen(POL="nt", OPOL="", PF=0, PAIR=1, DEPTH=2, PRE=4, R=4, STAT=0, PAD=0,
        IT_FLAG=10, IT_F=12, IT_D=13, QPOL="", name=NAME):
    L = []
    def a(s): L.append("    " + s)
    def lab(s): L.append(s + ":")
    VBASE = 65536
    QBASE = VBASE + R * 16384
    MBUF = QBASE + 8192
    LBUF = MBUF + 512
    LDS = LBUF + 512
    assert R <= 4 and PRE <= R and DEPTH < R
    C = f2u(128 ** -0.5 * math.log2(math.e))
    vQ, vS, vK, vVt = 8, 40, 168, 200
    vKA, vKO, vVO, vVR, vPR, vPW, vM = 216, 224, 228, 232, 233, 234, 235
    vT0, vT1, vT2, vT3, vLN = 236, 237, 238, 239, 240
    vX = 244
    NV = 252
    vA1, vA2, vML, vD, vF, vWO, vMO, vOO, vFO = 40, 48, 56, 60, 72, 73, 74, 75, 76
    vPs = vK
    def r(b, n): return f"v[{b}:{b+n-1}]"
    ops = []
    def vm(tag): ops.append(tag)
    def wait_vm(*tags):
        last = max(i for i, t in enumerate(ops) if t in tags)
        for t in tags: assert t in ops, t
        n = len(ops) - 1 - last
        assert n <= 63
        a(f"s_waitcnt vmcnt({n})")
    def stamp(s):
        if STAT:
            a(f"s_memrealtime s[{s}:{s+1}]")
            a("s_waitcnt lgkmcnt(0)")

    a(f"s_cmp_ge_u32 s2, 256")
    a(f"s_cbranch_scc1 L_end2")
    if PAD or STAT: a("s_memrealtime s[64:65]")
    a("s_load_dwordx8 s[4:11], s[0:1], 0")
    a("s_load_dwordx4 s[12:15], s[0:1], 32")
    a("v_lshrrev_b32 v1, 6, v0")
    a("v_bfe_u32 v2, v0, 4, 2")
    a("v_readfirstlane_b32 s3, v1")
    a("v_and_b32 v3, 15, v0")
    a("v_xor_b32 v4, v3, v2")
    a("v_lshl_add_u32 v5, v1, 4, v2")
    a("v_lshl_add_u32 v5, v5, 4, v4")
    a(f"v_lshlrev_b32 v{vKO}, 4, v5")
    if PAIR == 0:
        a("s_lshr_b32 s16, s2, 1")
        a("s_and_b32 s17, s2, 1")
        a("s_xor_b32 s18, s2, 1")
    else:
        a("s_lshr_b32 s16, s2, 4")
        a("s_lshl_b32 s16, s16, 3")
        a("s_and_b32 s17, s2, 7")
        a("s_or_b32 s16, s16, s17")
        a("s_bfe_u32 s17, s2, 0x10003")
        a("s_xor_b32 s18, s2, 8")
    a("s_lshl_b32 s48, s16, 1")
    a("s_add_u32 s48, s48, s17")
    a("s_lshl_b32 s48, s48, 18")
    a("s_lshl_b32 s44, s3, 14")
    for j in range(1, 4):
        a(f"v_xor_b32 v{vKO+j}, {64*j}, v{vKO}")
    a("s_mov_b32 s22, 0x40000")
    a("s_mov_b32 s23, 0x20000")
    a("s_mov_b32 s42, 16384")
    a("s_mov_b32 m0, s44")
    a("s_waitcnt lgkmcnt(0)")
    a("s_add_u32 s20, s6, s48")
    a("s_addc_u32 s21, s7, 0")

    def dmaK(c, first=False):
        if not first:
            a(f"s_add_u32 m0, s44, {(c&1)*8192}")
            a(f"s_mov_b32 s40, {c*32768}")
        so = "0" if first else "s40"
        for j in range(4):
            a(f"buffer_load_dwordx4 v{vKO+j}, s[20:23], {so} offen offset:{j*1024} {POL} lds"); vm(('k', c))
        a(f"s_add_u32 m0, s44, {(c&1)*8192+4096}")
        if first: a("s_lshl_b32 s53, s16, 13")
        else: a(f"s_mov_b32 s42, {c*32768+16384}")
        for j in range(4):
            a(f"buffer_load_dwordx4 v{vKO+j}, s[20:23], s42 offen offset:{j*1024} {POL} lds"); vm(('k', c))
    dmaK(0, True)
    a("s_add_u32 s28, s4, s53")
    a("s_addc_u32 s29, s5, 0")
    a("s_mov_b32 s30, 8192")
    a("s_mov_b32 s31, 0x20000")
    a("s_lshl_b32 s52, s3, 11")
    a(f"s_add_u32 m0, s52, {QBASE}")
    a("v_lshl_add_u32 v6, v1, 3, v2")
    a("v_and_b32 v7, 15, v6")
    a("v_xor_b32 v7, v7, v3")
    a("v_lshlrev_b32 v6, 8, v6")
    a(f"v_lshl_add_u32 v{vX}, v7, 4, v6")
    a(f"v_xor_b32 v{vX+1}, 64, v{vX}")
    a(f"buffer_load_dwordx4 v{vX}, s[28:31], 0 offen {QPOL} lds"); vm('q')
    a(f"buffer_load_dwordx4 v{vX+1}, s[28:31], 0 offen offset:1024 {QPOL} lds"); vm('q')
    if PF:
        a("s_getpc_b64 s[70:71]")
        lab("L_pc")
        a(f"v_lshlrev_b32 v6, 7, v0")
        a("v_min_u32 v6, L_end2-L_pc, v6")
        a(f"global_load_dword v{vX+2}, v6, s[70:71]"); vm('pf')
    dmaK(1)
    a(f"v_and_b32 v{vLN}, 63, v0")
    a(f"v_and_b32 v4, 31, v0")
    a(f"v_bfe_u32 v5, v0, 5, 1")
    a("v_xor_b32 v6, v3, v5")
    a("v_lshlrev_b32 v7, 8, v4")
    a(f"v_add_u32 v7, {QBASE}, v7")
    a(f"v_lshl_add_u32 v{vKA}, v6, 4, v7")
    for m in range(1, 8):
        a(f"v_xor_b32 v{vKA+m}, {32*m}, v{vKA}")
    a(f"v_lshlrev_b32 v7, 4, v4")
    a(f"v_add_u32 v{vX+4}, {MBUF}, v7")
    a(f"v_lshl_add_u32 v{vX+5}, v1, 2, v{vX+4}")
    a("s_add_u32 s24, s8, s48")
    a("s_addc_u32 s25, s9, 0")
    a("s_mov_b32 s26, 0x40000")
    a("s_mov_b32 s27, 0x20000")
    a(f"v_bfe_u32 v4, v0, 3, 3")
    a(f"v_lshlrev_b32 v6, 1, v2")
    a(f"v_and_b32 v7, 7, v0")
    a("v_xor_b32 v6, v6, v7")
    a("v_lshl_add_u32 v4, v1, 4, v4")
    a("v_lshlrev_b32 v4, 8, v4")
    a("v_lshl_add_u32 v4, v6, 4, v4")
    a("s_lshl_b32 s49, s17, 7")
    a(f"v_add_u32 v{vVO+2}, s49, v4")
    a(f"v_xor_b32 v{vVO}, 0x80, v{vVO+2}")
    a(f"v_add_u32 v{vVO+1}, 1024, v{vVO}")
    a(f"v_add_u32 v{vVO+3}, 1024, v{vVO+2}")
    a("s_lshl_b32 s45, s3, 12")
    a(f"s_add_u32 s45, s45, {VBASE}")
    a(f"v_bfe_u32 v4, v0, 2, 2")
    a(f"v_bfe_u32 v6, v0, 4, 1")
    a(f"v_lshl_add_u32 v7, v6, 2, v4")
    a(f"v_lshl_add_u32 v{vVR}, v5, 4, v7")
    a(f"v_lshlrev_b32 v{vVR}, 7, v{vVR}")
    a("v_lshrrev_b32 v7, 1, v7")
    a("v_xor_b32 v7, v7, v1")
    a(f"v_lshl_add_u32 v{vVR}, v7, 5, v{vVR}")
    a("v_and_b32 v7, 3, v0")
    a(f"v_lshl_add_u32 v{vVR}, v7, 3, v{vVR}")
    a(f"v_add_u32 v{vVR}, {VBASE}, v{vVR}")
    a(f"v_lshlrev_b32 v{vPW}, 4, v0")
    a(f"v_lshl_add_u32 v7, v6, 5, v3")
    a(f"v_lshlrev_b32 v7, 4, v7")
    a(f"v_lshl_add_u32 v{vPR}, v5, 12, v7")
    a(f"v_mov_b32 v{vM}, 0xff800000")
    a(f"s_mov_b32 s46, {C:#x}")
    a(f"s_sub_u32 s56, s44, {QBASE}")
    a("s_add_u32 s32, s10, s53")
    a("s_addc_u32 s33, s11, 0")
    a("s_mov_b32 s34, 8192")
    a("s_mov_b32 s35, 0x20000")
    a("s_mov_b32 s36, s14")
    a("s_mov_b32 s37, s15")
    a("s_mov_b32 s38, 0x400000")
    a("s_mov_b32 s39, 0x20000")
    a("s_lshl_b32 s57, s3, 12")
    a("s_lshl_b32 s58, s2, 14")
    a("s_add_u32 s58, s58, s57")
    a("s_lshl_b32 s59, s18, 14")
    a("s_add_u32 s59, s59, s57")
    a("s_mov_b32 s62, 0")
    wait_vm('q', ('k', 0))
    a("s_barrier")
    for m in range(8):
        a(f"ds_read_b128 {r(vQ+4*m,4)}, v{vKA+m}")
    for m in range(8):
        a(f"v_add_u32 v{vKA+m}, s56, v{vKA+m}")
    stamp(66)

    def dmaV(v):
        ps, t = v >> 3, v & 7
        a(f"s_add_u32 m0, s45, {(v % R)*16384}")
        a(f"s_mov_b32 s41, {t*32768}")
        for jj in range(2):
            a(f"buffer_load_dwordx4 v{vVO+2*ps+jj}, s[24:27], s41 offen offset:{jj*1024} {POL} lds"); vm(('v', v))
        a(f"s_mov_b32 s43, {t*32768+14336}")
        for jj in range(2):
            a(f"buffer_load_dwordx4 v{vVO+2*ps+jj}, s[24:27], s43 offen offset:{2048+jj*1024} {POL} lds"); vm(('v', v))
    def tmax(t):
        for i in range(8):
            a(f"v_max3_f32 v{vM}, v{vM}, v{vS+16*t+2*i}, v{vS+16*t+2*i+1}")
    vnext = 0
    for c in range(8):
        if c: wait_vm(('k', c))
        for m in range(8):
            a(f"ds_read_b128 {r(vK+4*m,4)}, v{vKA+m} offset:{(c&1)*8192}")
        if c: tmax(c - 1)
        for m in range(8):
            a(f"s_waitcnt lgkmcnt({7-m})")
            cc = "0" if m == 0 else r(vS+16*c, 16)
            a(f"v_mfma_f32_32x32x16_bf16 {r(vS+16*c,16)}, {r(vK+4*m,4)}, {r(vQ+4*m,4)}, {cc}")
        if c + 2 <= 7: dmaK(c + 2)
        else:
            n = (PRE + 1) // 2 if c == 6 else PRE - vnext
            for _ in range(n):
                dmaV(vnext); vnext += 1
    a("s_nop 7")
    tmax(7)
    a(f"v_mov_b32 v{vT1}, v{vM}")
    a("s_nop 1")
    a(f"v_permlane32_swap_b32 v{vM}, v{vT1}")
    a("s_nop 0")
    a(f"v_max_f32 v{vM}, v{vM}, v{vT1}")
    a(f"v_mul_f32 v{vM}, s46, v{vM}")
    a(f"ds_write_b32 v{vX+5}, v{vM}")
    a("s_waitcnt lgkmcnt(0)")
    a("s_barrier")
    a(f"ds_read_b128 {r(vX,4)}, v{vX+4}")
    for i in range(4):
        a(f"v_mov_b32 v{vT0+i}, 0")
    a("s_waitcnt lgkmcnt(0)")
    a(f"v_max3_f32 v{vM}, v{vX}, v{vX+1}, v{vX+2}")
    a(f"v_max_f32 v{vM}, v{vM}, v{vX+3}")
    for t in range(8):
        b = vS + 16*t
        for i in range(16):
            a(f"v_fma_f32 v{b+i}, v{b+i}, s46, -v{vM}")
        for i in range(16):
            a(f"v_exp_f32 v{b+i}, v{b+i}")
        for i in range(16):
            a(f"v_add_f32 v{vT0+(i&3)}, v{vT0+(i&3)}, v{b+i}")
        for i in range(8):
            a(f"v_cvt_pk_bf16_f32 v{b+i}, v{b+2*i}, v{b+2*i+1}")
        for s in range(2):
            a(f"ds_write_b128 v{vPW}, {r(b+4*s,4)} offset:{t*8192+s*4096}")
    a(f"v_add_f32 v{vT0}, v{vT0}, v{vT1}")
    a(f"v_add_f32 v{vT2}, v{vT2}, v{vT3}")
    a(f"v_add_f32 v{vT0}, v{vT0}, v{vT2}")
    a(f"v_mov_b32 v{vT1}, v{vT0}")
    a("s_nop 1")
    a(f"v_permlane32_swap_b32 v{vT0}, v{vT1}")
    a("s_nop 0")
    a(f"v_add_f32 v{vT0}, v{vT0}, v{vT1}")
    a(f"ds_write_b32 v{vX+5}, v{vT0} offset:512")
    a(f"v_lshlrev_b32 v{vX+6}, 4, v3")
    a(f"v_add_u32 v{vX+7}, {MBUF}, v{vX+6}")
    a("s_waitcnt lgkmcnt(0)")
    a("s_barrier")
    stamp(68)
    a(f"ds_read_b128 {r(80,4)}, v{vX+7}")
    a(f"ds_read_b128 {r(84,4)}, v{vX+7} offset:256")
    a(f"ds_read_b128 {r(88,4)}, v{vX+7} offset:512")
    a(f"ds_read_b128 {r(92,4)}, v{vX+7} offset:768")
    def pread(u):
        t = u & 7
        for src in range(4):
            for qh in range(2):
                a(f"ds_read_b128 {r(vPs+8*src+4*qh,4)}, v{vPR} offset:{t*8192+src*1024+qh*256}")
    pread(0)
    a(f"v_lshlrev_b32 v{vWO}, 4, v{vLN}")
    a(f"v_add_u32 v{vMO}, 2048, v{vX+6}")
    a(f"v_mov_b32 v{vFO}, s18")
    a(f"v_bfe_u32 v4, v0, 4, 1")
    a(f"v_lshl_add_u32 v4, v4, 4, v3")
    a(f"v_lshlrev_b32 v4, 8, v4")
    a(f"v_lshl_add_u32 v4, v5, 4, v4")
    a(f"v_lshl_add_u32 v4, v1, 5, v4")
    a(f"v_add_u32 v{vOO}, s49, v4")
    a("s_waitcnt lgkmcnt(8)")
    a(f"v_max3_f32 v{vML}, v80, v81, v82")
    a(f"v_max3_f32 v{vML+2}, v84, v85, v86")
    a(f"v_add_f32 v{vML+1}, v88, v89")
    a(f"v_add_f32 v{vML+3}, v92, v93")
    a(f"v_max_f32 v{vML}, v{vML}, v83")
    a(f"v_max_f32 v{vML+2}, v{vML+2}, v87")
    a(f"v_add_f32 v90, v90, v91")
    a(f"v_add_f32 v94, v94, v95")
    a(f"v_add_f32 v{vML+1}, v{vML+1}, v90")
    a(f"v_add_f32 v{vML+3}, v{vML+3}, v94")

    def loadD():
        a(f"buffer_load_dwordx4 {r(vD+8,4)}, v{vMO}, s[36:39], s59 offen sc1")
        a(f"buffer_load_dwordx4 {r(vD,4)}, v{vWO}, s[36:39], s59 offen sc1")
        a(f"buffer_load_dwordx4 {r(vD+4,4)}, v{vWO}, s[36:39], s59 offen offset:1024 sc1")
    def factors():
        for qh in range(2):
            a(f"v_max_f32 v{82+qh}, v{vML+2*qh}, v{vD+8+2*qh}")
        for qh in range(2):
            a(f"v_sub_f32 v{80+qh}, v{vML+2*qh}, v{82+qh}")
            a(f"v_sub_f32 v{84+qh}, v{vD+8+2*qh}, v{82+qh}")
        for qh in range(2):
            a(f"v_exp_f32 v{80+qh}, v{80+qh}")
            a(f"v_exp_f32 v{84+qh}, v{84+qh}")
        a("s_nop 0")
        for qh in range(2):
            a(f"v_mul_f32 v{82+qh}, v{vML+2*qh+1}, v{80+qh}")
        for qh in range(2):
            a(f"v_fma_f32 v{82+qh}, v{vD+9+2*qh}, v{84+qh}, v{82+qh}")
        for qh in range(2):
            a(f"v_rcp_f32 v{82+qh}, v{82+qh}")
        a("s_nop 0")
        for qh in range(2):
            a(f"v_mul_f32 v{80+qh}, v{80+qh}, v{82+qh}")
            a(f"v_mul_f32 v{84+qh}, v{84+qh}, v{82+qh}")
        for i in range(8):
            a(f"v_mul_f32 v{vD+i}, v{vD+i}, v{84+i//4}")
    fac_done = False
    for u in range(16):
        tags = [('v', u)]
        if u == IT_FLAG: tags.append('pub')
        if u == IT_D: tags.append('f')
        if u == 15 and IT_D + DEPTH <= 15:
            wait_vm('d')
            factors(); fac_done = True
        wait_vm(*tags)
        a("s_barrier")
        if u == 15: stamp(72)
        for src in range(4):
            for uu in range(2):
                a(f"ds_read_b64_tr_b16 {r(vVt+4*src+2*uu,2)}, v{vVR} offset:{(u%R)*16384+src*4096+uu*1024}")
        if u == 8:
            a(f"buffer_store_dwordx4 {r(vA1,4)}, v{vWO}, s[36:39], s58 offen sc1"); vm('pub')
            a(f"buffer_store_dwordx4 {r(vA1+4,4)}, v{vWO}, s[36:39], s58 offen offset:1024 sc1"); vm('pub')
            a(f"buffer_store_dwordx4 {r(vML,4)}, v{vMO}, s[36:39], s58 offen sc1"); vm('pub')
        if u == IT_FLAG:
            a("s_cmp_lg_u32 s3, 0")
            a("s_cbranch_scc1 L_noflag")
            a(f"v_mov_b32 v{vT0}, s2")
            a(f"v_mov_b32 v{vT1}, 1")
            a("s_mov_b64 exec, 1")
            a(f"global_store_byte v{vT0}, v{vT1}, s[12:13] sc1")
            a("s_mov_b64 exec, -1")
            lab("L_noflag")
        if u == IT_F:
            a(f"global_load_ubyte v{vF}, v{vFO}, s[12:13] sc1"); vm('f')
        if u == IT_D:
            a(f"v_readfirstlane_b32 s61, v{vF}")
            loadD(); vm('d'); vm('d'); vm('d')
        v = u + DEPTH
        if vnext <= v <= 15:
            assert v == vnext
            dmaV(v); vnext += 1
        acc = vA1 if u < 8 else vA2
        for src in range(4):
            a(f"s_waitcnt lgkmcnt({6-2*src})")
            for qh in range(2):
                cc = "0" if (u & 7) == 0 and src == 0 else r(acc+4*qh, 4)
                a(f"v_mfma_f32_16x16x32_bf16 {r(acc+4*qh,4)}, {r(vVt+4*src,4)}, {r(vPs+8*src+4*qh,4)}, {cc}")
        if u < 15: pread(u + 1)
    a("s_cmp_lg_u32 s61, 0")
    a("s_cbranch_scc0 L_spin")
    if not fac_done:
        a("s_waitcnt vmcnt(0)")
        factors()
    else:
        a("s_nop 5")
    lab("L_fin")
    for i in range(8):
        a(f"v_fma_f32 v{vD+i}, v{vA2+i}, v{80+i//4}, v{vD+i}")
    for i in range(4):
        a(f"v_cvt_pk_bf16_f32 v{vD+8+i}, v{vD+2*i}, v{vD+2*i+1}")
    a("s_nop 1")
    a(f"v_permlane16_swap_b32 v{vD+8}, v{vD+10}")
    a(f"v_permlane16_swap_b32 v{vD+9}, v{vD+11}")
    a(f"buffer_store_dwordx4 {r(vD+8,4)}, v{vOO}, s[32:35], 0 offen {OPOL}")
    lab("L_end")
    if STAT:
        a("s_waitcnt vmcnt(0)")
        a("s_memrealtime s[74:75]")
        a("s_waitcnt lgkmcnt(0)")
        a("s_mov_b64 exec, 1")
        a("s_getreg_b32 s76, hwreg(HW_REG_XCC_ID)")
        a("s_lshl_b32 s77, s2, 2")
        a("s_add_u32 s77, s77, s3")
        a("s_lshl_b32 s77, s77, 5")
        a("s_add_u32 s77, s77, 0x1000000")
        for i, sr in enumerate(["s64", "s66", "s68", "s72", "s74", "s76", "s62", "s17"]):
            a(f"v_mov_b32 v{8+i}, {sr}")
        a("v_mov_b32 v0, s77")
        a("global_store_dwordx4 v0, v[8:11], s[14:15]")
        a("global_store_dwordx4 v0, v[12:15], s[14:15] offset:16")
    if PAD:
        lab("L_padl")
        a("s_memrealtime s[66:67]")
        a("s_waitcnt lgkmcnt(0)")
        a("s_sub_u32 s66, s66, s64")
        a(f"s_cmp_lt_u32 s66, {PAD*100}")
        a("s_cbranch_scc1 L_padl")
    a("s_endpgm")
    lab("L_spin")
    a(f"global_load_ubyte v{vF}, v{vFO}, s[12:13] sc1")
    a("s_add_u32 s62, s62, 1")
    a("s_waitcnt vmcnt(0)")
    a(f"v_readfirstlane_b32 s61, v{vF}")
    a("s_cmp_lg_u32 s61, 0")
    a("s_cbranch_scc1 L_got")
    a("s_sleep 1")
    a("s_cmp_lt_u32 s62, 0x40000")
    a("s_cbranch_scc1 L_spin")
    lab("L_got")
    loadD()
    a("s_waitcnt vmcnt(0)")
    factors()
    a("s_branch L_fin")
    lab("L_end2")
    a("s_endpgm")
    body = "\n".join(L)
    src = HEADER + f"; @launch grid=(256,1,1) block=(256,1,1) lds={LDS}\n" + f""".amdgcn_target "amdgcn-amd-amdhsa--gfx950"
.text
.globl {name}
.p2align 8
.type {name},@function
{name}:
{body}
.section .rodata,"a"
.p2align 6
.amdhsa_kernel {name}
  .amdhsa_next_free_vgpr {NV}
  .amdhsa_next_free_sgpr 80
  .amdhsa_accum_offset {NV}
  .amdhsa_group_segment_fixed_size 0
  .amdhsa_kernarg_size 48
  .amdhsa_user_sgpr_count 2
  .amdhsa_user_sgpr_kernarg_segment_ptr 1
  .amdhsa_system_sgpr_workgroup_id_x 1
.end_amdhsa_kernel
"""
    return src

if __name__ == '__main__':
    out = sys.argv[1]
    kw = {}
    for x in sys.argv[2:]:
        k, v = x.split('=')
        kw[k] = int(v) if v.lstrip('-').isdigit() else v.replace('_', ' ')
    for k in ('POL', 'OPOL', 'QPOL'):
        if kw.get(k) == 'd': kw[k] = ''
    open(out, 'w').write(gen(**kw))
```

```python
import sys, math, struct

def f2u(x): return struct.unpack('<I', struct.pack('<f', x))[0]

HEADER = """; Kernarg layout for this problem (48 bytes, ptrs only, base s[0:1]):
"""
NAME = "standalone__gqa_softmax__sampling_kernel"

def gen(POL="nt", OPOL="", PF=0, PAIR=1, DEPTH=3, PRE=5, R=5, STAT=0, PAD=0,
        IT_R=7, IT_FLAG=10, IT_F=11, LAG=2, NCHK=2, QPOL="", TL=0, VSCHED="122", FORCE=0, name=NAME):
    L = []
    def a(s): L.append("    " + s)
    def lab(s): L.append(s + ":")
    VBASE = 65536
    QBASE = VBASE + R * 16384
    MBUF = QBASE + 8192
    LBUF = MBUF + 512
    LDS = LBUF + 512
    FW = 0x400000
    assert R <= 5 and PRE <= R and DEPTH < R
    VSCHED = [int(c) for c in str(VSCHED)]
    assert sum(VSCHED) == PRE
    C = f2u(128 ** -0.5 * math.log2(math.e))
    vQ, vS, vK, vVt = 8, 40, 168, 200
    vKA, vKO, vVO, vVR, vPR, vPW, vM = 216, 224, 228, 232, 234, 235, 236
    vT0, vT1, vT2, vT3, vLN = 237, 238, 239, 240, 241
    vMA, vMW = 242, 243
    vX = 244
    NV = 256 if TL else 252
    vA1, vA2 = 40, 48
    vML, vD, vF, vWO, vMO, vOO, vFL, vZ, vU = 8, 12, 24, 26, 27, 28, 29, 30, 32
    vG = 32
    vPs = vK
    def r(b, n): return f"v[{b}:{b+n-1}]"
    ops = []
    def vm(tag): ops.append(tag)
    def wait_vm(*tags):
        for t in tags: assert t in ops, t
        last = max(i for i, t in enumerate(ops) if t in tags)
        n = len(ops) - 1 - last
        assert n <= 63
        a(f"s_waitcnt vmcnt({n})")
    def stamp(s):
        if STAT:
            a(f"s_memrealtime s[{s}:{s+1}]")
            a("s_waitcnt lgkmcnt(0)")
    tl = [0]
    def tls():
        if TL:
            a("s_memrealtime s[78:79]")
            a("s_waitcnt lgkmcnt(0)")
            a(f"v_writelane_b32 v252, s78, {tl[0]}")
            tl[0] += 1

    a(f"s_cmp_ge_u32 s2, 256")
    a(f"s_cbranch_scc1 L_end2")
    if PAD or STAT or TL: a("s_memrealtime s[64:65]")
    a("s_load_dwordx8 s[4:11], s[0:1], 0")
    a("s_load_dwordx4 s[12:15], s[0:1], 32")
    a("v_lshrrev_b32 v1, 6, v0")
    a("v_bfe_u32 v2, v0, 4, 2")
    a("v_readfirstlane_b32 s3, v1")
    a("v_and_b32 v3, 15, v0")
    a("v_xor_b32 v4, v3, v2")
    a("v_lshl_add_u32 v5, v1, 4, v2")
    a("v_lshl_add_u32 v5, v5, 4, v4")
    a(f"v_lshlrev_b32 v{vKO}, 4, v5")
    if PAIR == 0:
        a("s_lshr_b32 s16, s2, 1")
        a("s_and_b32 s17, s2, 1")
        a("s_xor_b32 s18, s2, 1")
    else:
        a("s_lshr_b32 s16, s2, 4")
        a("s_lshl_b32 s16, s16, 3")
        a("s_and_b32 s17, s2, 7")
        a("s_or_b32 s16, s16, s17")
        a("s_bfe_u32 s17, s2, 0x10003")
        a("s_xor_b32 s18, s2, 8")
    a("s_lshl_b32 s48, s16, 1")
    a("s_add_u32 s48, s48, s17")
    a("s_lshl_b32 s48, s48, 18")
    a("s_lshl_b32 s44, s3, 14")
    a("s_lshl_b32 s53, s16, 13")
    a("s_lshl_b32 s52, s3, 11")
    a(f"s_add_u32 m0, s52, {QBASE}")
    a("v_lshl_add_u32 v6, v1, 3, v2")
    a("v_and_b32 v7, 15, v6")
    a("v_xor_b32 v7, v7, v3")
    a("v_lshlrev_b32 v6, 8, v6")
    a(f"v_lshl_add_u32 v{vX}, v7, 4, v6")
    a(f"v_xor_b32 v{vX+1}, 64, v{vX}")
    for j in range(1, 4):
        a(f"v_xor_b32 v{vKO+j}, {64*j}, v{vKO}")
    a("s_mov_b32 s22, 0x40000")
    a("s_mov_b32 s23, 0x20000")
    a("s_mov_b32 s30, 8192")
    a("s_mov_b32 s31, 0x20000")
    a("s_waitcnt lgkmcnt(0)")
    a("s_add_u32 s28, s4, s53")
    a("s_addc_u32 s29, s5, 0")
    a("s_add_u32 s20, s6, s48")
    a("s_addc_u32 s21, s7, 0")
    a(f"buffer_load_dwordx4 v{vX}, s[28:31], 0 offen {QPOL} lds"); vm('q')
    a(f"buffer_load_dwordx4 v{vX+1}, s[28:31], 0 offen offset:1024 {QPOL} lds"); vm('q')

    def dmaK(c):
        a(f"s_add_u32 m0, s44, {(c&1)*8192}")
        a(f"s_mov_b32 s40, {c*32768}")
        for j in range(4):
            a(f"buffer_load_dwordx4 v{vKO+j}, s[20:23], s40 offen offset:{j*1024} {POL} lds"); vm(('k', c))
        a(f"s_add_u32 m0, s44, {(c&1)*8192+4096}")
        a(f"s_mov_b32 s42, {c*32768+16384}")
        for j in range(4):
            a(f"buffer_load_dwordx4 v{vKO+j}, s[20:23], s42 offen offset:{j*1024} {POL} lds"); vm(('k', c))
    dmaK(0)
    if PF:
        a("s_getpc_b64 s[70:71]")
        lab("L_pc")
        a(f"v_lshlrev_b32 v6, 7, v0")
        a("v_min_u32 v6, L_end2-L_pc, v6")
        a(f"global_load_dword v{vX+2}, v6, s[70:71]"); vm('pf')
    dmaK(1)
    a("s_mov_b32 s36, s14")
    a("s_mov_b32 s37, s15")
    a(f"s_mov_b32 s38, {FW + 65536}")
    a("s_mov_b32 s39, 0x20000")
    a("s_lshl_b32 s54, s2, 8")
    a(f"s_add_u32 s54, s54, {FW}")
    a("s_lshl_b32 s55, s18, 8")
    a(f"s_add_u32 s55, s55, {FW}")
    a(f"buffer_load_dwordx2 {r(vX+4,2)}, off, s[36:39], s54 sc1"); vm('e')
    a(f"buffer_load_dwordx2 {r(vX+6,2)}, off, s[36:39], s55 sc1"); vm('e')
    a(f"v_and_b32 v{vLN}, 63, v0")
    a(f"v_and_b32 v4, 31, v0")
    a(f"v_bfe_u32 v5, v0, 5, 1")
    a("v_xor_b32 v6, v3, v5")
    a("v_lshlrev_b32 v7, 8, v4")
    a(f"v_add_u32 v7, {QBASE}, v7")
    a(f"v_lshl_add_u32 v{vKA}, v6, 4, v7")
    for m in range(1, 8):
        a(f"v_xor_b32 v{vKA+m}, {32*m}, v{vKA}")
    a(f"v_lshlrev_b32 v7, 4, v4")
    a(f"v_add_u32 v{vMA}, {MBUF}, v7")
    a(f"v_lshl_add_u32 v{vMW}, v1, 2, v{vMA}")
    a("s_add_u32 s24, s8, s48")
    a("s_addc_u32 s25, s9, 0")
    a("s_mov_b32 s26, 0x40000")
    a("s_mov_b32 s27, 0x20000")
    a(f"v_bfe_u32 v4, v0, 3, 3")
    a(f"v_lshlrev_b32 v6, 1, v2")
    a(f"v_and_b32 v7, 7, v0")
    a("v_xor_b32 v6, v6, v7")
    a("v_lshl_add_u32 v4, v1, 4, v4")
    a("v_lshlrev_b32 v4, 8, v4")
    a("v_lshl_add_u32 v4, v6, 4, v4")
    a("s_lshl_b32 s49, s17, 7")
    a(f"v_add_u32 v{vVO+2}, s49, v4")
    a(f"v_xor_b32 v{vVO}, 0x80, v{vVO+2}")
    a(f"v_add_u32 v{vVO+1}, 1024, v{vVO}")
    a(f"v_add_u32 v{vVO+3}, 1024, v{vVO+2}")
    a("s_lshl_b32 s57, s3, 12")
    a(f"s_add_u32 s45, s57, {VBASE}")
    a(f"v_bfe_u32 v4, v0, 2, 2")
    a(f"v_bfe_u32 v6, v0, 4, 1")
    a(f"v_lshl_add_u32 v7, v6, 2, v4")
    a(f"v_lshl_add_u32 v{vVR}, v5, 4, v7")
    a(f"v_lshlrev_b32 v{vVR}, 7, v{vVR}")
    a("v_lshrrev_b32 v7, 1, v7")
    a("v_xor_b32 v7, v7, v1")
    a(f"v_lshl_add_u32 v{vVR}, v7, 5, v{vVR}")
    a("v_and_b32 v7, 3, v0")
    a(f"v_lshl_add_u32 v{vVR}, v7, 3, v{vVR}")
    a(f"v_add_u32 v{vVR}, {VBASE}, v{vVR}")
    a(f"v_add_u32 v{vVR+1}, 0x10000, v{vVR}")
    a(f"v_lshlrev_b32 v{vPW}, 4, v0")
    a(f"v_lshl_add_u32 v7, v6, 5, v3")
    a(f"v_lshlrev_b32 v7, 4, v7")
    a(f"v_lshl_add_u32 v{vPR}, v5, 12, v7")
    a(f"v_mov_b32 v{vM}, 0xff800000")
    a(f"s_mov_b32 s46, {C:#x}")
    a(f"s_sub_u32 s56, s44, {QBASE}")
    a("s_add_u32 s32, s10, s53")
    a("s_addc_u32 s33, s11, 0")
    a("s_mov_b32 s34, 8192")
    a("s_mov_b32 s35, 0x20000")
    a("s_lshl_b32 s58, s2, 14")
    a("s_add_u32 s58, s58, s57")
    a("s_lshl_b32 s59, s18, 14")
    a("s_add_u32 s59, s59, s57")
    a("s_mov_b32 s62, 0")
    wait_vm('q')
    a("s_barrier")
    for m in range(8):
        a(f"ds_read_b128 {r(vQ+4*m,4)}, v{vKA+m}")
    for m in range(8):
        a(f"v_add_u32 v{vKA+m}, s56, v{vKA+m}")

    def dmaV(v):
        ps, t = v >> 3, v & 7
        a(f"s_add_u32 m0, s45, {(v % R)*16384}")
        a(f"s_mov_b32 s41, {t*32768}")
        for jj in range(2):
            a(f"buffer_load_dwordx4 v{vVO+2*ps+jj}, s[24:27], s41 offen offset:{jj*1024} {POL} lds"); vm(('v', v))
        a(f"s_mov_b32 s43, {t*32768+14336}")
        for jj in range(2):
            a(f"buffer_load_dwordx4 v{vVO+2*ps+jj}, s[24:27], s43 offen offset:{2048+jj*1024} {POL} lds"); vm(('v', v))
    def tmax(t):
        for i in range(8):
            a(f"v_max3_f32 v{vM}, v{vM}, v{vS+16*t+2*i}, v{vS+16*t+2*i+1}")
    vnext = 0
    for c in range(8):
        wait_vm(('k', c))
        if c == 0: stamp(66)
        tls()
        for m in range(8):
            a(f"ds_read_b128 {r(vK+4*m,4)}, v{vKA+m} offset:{(c&1)*8192}")
        if c: tmax(c - 1)
        if c == 2:
            a(f"v_readfirstlane_b32 s50, v{vX+4}")
            a(f"v_readfirstlane_b32 s51, v{vX+5}")
            a(f"v_readfirstlane_b32 s60, v{vX+6}")
            a(f"v_readfirstlane_b32 s63, v{vX+7}")
        for m in range(8):
            a(f"s_waitcnt lgkmcnt({7-m})")
            cc = "0" if m == 0 else r(vS+16*c, 16)
            a(f"v_mfma_f32_32x32x16_bf16 {r(vS+16*c,16)}, {r(vK+4*m,4)}, {r(vQ+4*m,4)}, {cc}")
        if c + 2 <= 7: dmaK(c + 2)
        if c in (5, 6):
            for _ in range(VSCHED[c-5]):
                dmaV(vnext); vnext += 1
    a("s_add_u32 s50, s50, 1")
    a("s_add_u32 s51, s51, 1")
    a("s_add_u32 s60, s60, 1")
    for i in range(4):
        a(f"v_mov_b32 v{vT0+i}, 0")
    a("s_nop 4")
    tmax(7)
    a(f"v_mov_b32 v{vX}, v{vM}")
    a(f"v_cmp_eq_u32 vcc, 0, v0")
    a(f"v_mov_b32 v{vU}, s51")
    a(f"v_permlane32_swap_b32 v{vM}, v{vX}")
    a(f"v_mov_b32 v{vFL}, 0x7ffffff0")
    a(f"v_max_f32 v{vM}, v{vM}, v{vX}")
    a(f"v_mul_f32 v{vM}, s46, v{vM}")
    a(f"ds_write_b32 v{vMW}, v{vM}")
    a(f"v_cndmask_b32 v{vFL}, v{vFL}, 0, vcc")
    for _ in range(VSCHED[2]):
        dmaV(vnext); vnext += 1
    tls()
    a("s_waitcnt lgkmcnt(0)")
    a("s_barrier")
    tls()
    a(f"ds_read_b128 {r(vX,4)}, v{vMA}")
    a(f"buffer_store_dword v{vU}, v{vFL}, s[36:39], s54 offen offset:4 sc1"); vm('r')
    a(f"v_lshlrev_b32 v{vWO}, 4, v{vLN}")
    a(f"v_lshlrev_b32 v{vMO}, 4, v3")
    a(f"v_add_u32 v{vZ}, {MBUF}, v{vMO}")
    a(f"v_add_u32 v{vMO}, 2048, v{vMO}")
    a("s_waitcnt lgkmcnt(0)")
    a(f"v_max3_f32 v{vM}, v{vX}, v{vX+1}, v{vX+2}")
    a(f"v_max_f32 v{vM}, v{vM}, v{vX+3}")
    def exps(t):
        b = vS + 16*t
        for i in range(16):
            a(f"v_fma_f32 v{b+i}, v{b+i}, s46, -v{vM}")
        for i in range(16):
            a(f"v_exp_f32 v{b+i}, v{b+i}")
        for i in range(16):
            a(f"v_add_f32 v{vT0+(i&3)}, v{vT0+(i&3)}, v{b+i}")
        for i in range(8):
            a(f"v_cvt_pk_bf16_f32 v{b+i}, v{b+2*i}, v{b+2*i+1}")
    def pwrite(t):
        b = vS + 16*t
        for s in range(2):
            a(f"ds_write_b128 v{vPW}, {r(b+4*s,4)} offset:{t*8192+s*4096}")
    exps(0); pwrite(0)
    a(f"v_bfe_u32 v4, v0, 4, 1")
    a(f"v_lshl_add_u32 v4, v4, 4, v3")
    a(f"v_lshlrev_b32 v4, 8, v4")
    a(f"v_lshl_add_u32 v4, v5, 4, v4")
    a(f"v_lshl_add_u32 v4, v1, 5, v4")
    a(f"v_add_u32 v{vOO}, s49, v4")
    stamp(68)
    def pread(u):
        t = u & 7
        for src in range(4):
            for qh in range(2):
                a(f"ds_read_b128 {r(vPs+8*src+4*qh,4)}, v{vPR} offset:{t*8192+src*1024+qh*256}")
    def loadD():
        a(f"buffer_load_dwordx4 {r(vD+8,4)}, v{vMO}, s[36:39], s59 offen sc1")
        a(f"buffer_load_dwordx4 {r(vD,4)}, v{vWO}, s[36:39], s59 offen sc1")
        a(f"buffer_load_dwordx4 {r(vD+4,4)}, v{vWO}, s[36:39], s59 offen offset:1024 sc1")
    def factors():
        for qh in range(2):
            a(f"v_max_f32 v{vG+2+qh}, v{vML+2*qh}, v{vD+8+2*qh}")
        for qh in range(2):
            a(f"v_sub_f32 v{vG+qh}, v{vML+2*qh}, v{vG+2+qh}")
            a(f"v_sub_f32 v{vG+4+qh}, v{vD+8+2*qh}, v{vG+2+qh}")
        for qh in range(2):
            a(f"v_exp_f32 v{vG+qh}, v{vG+qh}")
            a(f"v_exp_f32 v{vG+4+qh}, v{vG+4+qh}")
        a("s_nop 0")
        for qh in range(2):
            a(f"v_mul_f32 v{vG+2+qh}, v{vML+2*qh+1}, v{vG+qh}")
        for qh in range(2):
            a(f"v_fma_f32 v{vG+2+qh}, v{vD+9+2*qh}, v{vG+4+qh}, v{vG+2+qh}")
        for qh in range(2):
            a(f"v_rcp_f32 v{vG+2+qh}, v{vG+2+qh}")
        a("s_nop 0")
        for qh in range(2):
            a(f"v_mul_f32 v{vG+qh}, v{vG+qh}, v{vG+2+qh}")
            a(f"v_mul_f32 v{vG+4+qh}, v{vG+4+qh}, v{vG+2+qh}")
        for i in range(8):
            a(f"v_mul_f32 v{vD+i}, v{vD+i}, v{vG+4+i//4}")
    chk_at = {IT_F + k + LAG: k for k in range(NCHK)}
    assert max(chk_at) <= 15
    d_before_last = (IT_F + LAG + DEPTH <= 15) and NCHK == 1
    for u in range(16):
        tags = [('v', u)]
        if u == IT_FLAG: tags += ['pub', 'r2']
        if u in chk_at: tags.append(('f', chk_at[u]))
        if u == 15 and d_before_last:
            wait_vm('d'); factors()
        wait_vm(*tags)
        if u <= 7: a("s_waitcnt lgkmcnt(0)")
        tls()
        a("s_barrier")
        tls()
        if u == 15: stamp(72)
        if u <= 7: pread(u)
        for src in range(4):
            for uu in range(2):
                sl = u % R
                a(f"ds_read_b64_tr_b16 {r(vVt+4*src+2*uu,2)}, v{vVR + (sl >> 2)} offset:{(sl & 3)*16384+src*4096+uu*1024}")
        if u == IT_R:
            a(f"buffer_load_dword v{vU+1}, off, s[36:39], s55 offset:4 sc1"); vm('r2')
        if u == 8:
            a(f"buffer_store_dwordx4 {r(vA1,4)}, v{vWO}, s[36:39], s58 offen sc1"); vm('pub')
            a(f"buffer_store_dwordx4 {r(vA1+4,4)}, v{vWO}, s[36:39], s58 offen offset:1024 sc1"); vm('pub')
            a(f"buffer_store_dwordx4 {r(vML,4)}, v{vMO}, s[36:39], s58 offen sc1"); vm('pub')
        if u == IT_FLAG:
            a(f"v_mov_b32 v{vU}, s50")
            a(f"v_readfirstlane_b32 s47, v{vU+1}")
            a(f"buffer_store_dword v{vU}, v{vFL}, s[36:39], s54 offen sc1"); vm('flag')
            if FORCE == 1: a("s_mov_b32 s47, s63")
            a("s_cmp_lg_u32 s47, s63")
            a("s_cbranch_scc0 L_dbgflag")
            lab("L_dbgback")
        if IT_F <= u < IT_F + NCHK:
            a(f"buffer_load_dword v{vF+u-IT_F}, off, s[36:39], s55 sc1"); vm(('f', u - IT_F))
        if u in chk_at:
            k = chk_at[u]
            if k == 0:
                a(f"v_readfirstlane_b32 s61, v{vF}")
                loadD(); vm('d'); vm('d'); vm('d')
            else:
                a("s_cmp_eq_u32 s61, s60")
                a(f"s_cbranch_scc1 L_have{k}")
                a(f"v_readfirstlane_b32 s61, v{vF+k}")
                loadD()
                lab(f"L_have{k}")
                assert vnext == 16
        v = u + DEPTH
        if vnext <= v <= 15:
            assert v == vnext
            dmaV(v); vnext += 1
        if u < 7: exps(u + 1)
        if u == 6:
            a(f"v_add_f32 v{vT0}, v{vT0}, v{vT1}")
            a(f"v_add_f32 v{vT2}, v{vT2}, v{vT3}")
            a(f"v_add_f32 v{vT0}, v{vT0}, v{vT2}")
            a(f"v_mov_b32 v{vT1}, v{vT0}")
            a("s_nop 1")
            a(f"v_permlane32_swap_b32 v{vT0}, v{vT1}")
            a("s_nop 0")
            a(f"v_add_f32 v{vT0}, v{vT0}, v{vT1}")
        acc = vA1 if u < 8 else vA2
        for src in range(4):
            a(f"s_waitcnt lgkmcnt({6-2*src})")
            for qh in range(2):
                cc = "0" if (u & 7) == 0 and src == 0 else r(acc+4*qh, 4)
                a(f"v_mfma_f32_16x16x32_bf16 {r(acc+4*qh,4)}, {r(vVt+4*src,4)}, {r(vPs+8*src+4*qh,4)}, {cc}")
        if u < 7: pwrite(u + 1)
        if u == 6:
            a(f"ds_write_b32 v{vMW}, v{vT0} offset:512")
        if u == 7:
            for i in range(4):
                a(f"ds_read_b128 {r(56+4*i,4)}, v{vZ} offset:{256*i}")
        if 7 <= u < 15: pread(u + 1)
        if u == 7:
            a("s_waitcnt lgkmcnt(8)")
            a(f"v_max3_f32 v{vML}, v56, v57, v58")
            a(f"v_max3_f32 v{vML+2}, v60, v61, v62")
            a(f"v_add_f32 v{vML+1}, v64, v65")
            a(f"v_add_f32 v{vML+3}, v68, v69")
            a(f"v_max_f32 v{vML}, v{vML}, v59")
            a(f"v_max_f32 v{vML+2}, v{vML+2}, v63")
            a(f"v_add_f32 v66, v66, v67")
            a(f"v_add_f32 v70, v70, v71")
            a(f"v_add_f32 v{vML+1}, v{vML+1}, v66")
            a(f"v_add_f32 v{vML+3}, v{vML+3}, v70")
    if FORCE == 2: a("s_add_u32 s61, s60, 1")
    if FORCE == 1:
        a("s_add_u32 s60, s60, 5")
    a("s_cmp_eq_u32 s61, s60")
    a("s_cbranch_scc0 L_spin")
    if not d_before_last:
        a("s_waitcnt vmcnt(0)")
        factors()
    else:
        a("s_nop 5")
    lab("L_fin")
    for i in range(8):
        a(f"v_fma_f32 v{vD+i}, v{vA2+i}, v{vG+i//4}, v{vD+i}")
    for i in range(4):
        a(f"v_cvt_pk_bf16_f32 v{vD+8+i}, v{vD+2*i}, v{vD+2*i+1}")
    a("s_nop 1")
    a(f"v_permlane16_swap_b32 v{vD+8}, v{vD+10}")
    a(f"v_permlane16_swap_b32 v{vD+9}, v{vD+11}")
    a(f"buffer_store_dwordx4 {r(vD+8,4)}, v{vOO}, s[32:35], 0 offen {OPOL}")
    lab("L_end")
    if STAT:
        a("s_waitcnt vmcnt(0)")
        a("s_memrealtime s[74:75]")
        a("s_waitcnt lgkmcnt(0)")
        a("s_mov_b64 exec, 1")
        a("s_getreg_b32 s76, hwreg(HW_REG_XCC_ID)")
        a("s_lshl_b32 s77, s2, 2")
        a("s_add_u32 s77, s77, s3")
        a("s_lshl_b32 s77, s77, 5")
        a("s_add_u32 s77, s77, 0x1000000")
        for i, sr in enumerate(["s64", "s66", "s68", "s72", "s74", "s76", "s62", "s17"]):
            a(f"v_mov_b32 v{8+i}, {sr}")
        a("v_mov_b32 v0, s77")
        a("global_store_dwordx4 v0, v[8:11], s[14:15]")
        a("global_store_dwordx4 v0, v[12:15], s[14:15] offset:16")
    if TL:
        a("s_mov_b64 exec, -1")
        a("s_waitcnt vmcnt(0)")
        tls()
        a("v_writelane_b32 v252, s64, 63")
        a("s_lshl_b32 s77, s2, 10")
        a("s_add_u32 s77, s77, 0x2000000")
        a(f"v_lshlrev_b32 v1, 2, v{vLN}")
        a("s_lshl_b32 s76, s3, 8")
        a("s_add_u32 s77, s77, s76")
        a("v_add_u32 v1, s77, v1")
        a("global_store_dword v1, v252, s[14:15]")
    if PAD:
        lab("L_padl")
        a("s_memrealtime s[66:67]")
        a("s_waitcnt lgkmcnt(0)")
        a("s_sub_u32 s66, s66, s64")
        a(f"s_cmp_lt_u32 s66, {PAD*100}")
        a("s_cbranch_scc1 L_padl")
    a("s_endpgm")
    lab("L_dbgflag")
    a("s_cmp_lg_u32 s3, 0")
    a("s_cbranch_scc1 L_dbgback")
    a(f"v_mov_b32 v{vG+2}, s2")
    a(f"v_mov_b32 v{vG+3}, 1")
    a("s_mov_b64 exec, 1")
    a(f"global_store_byte v{vG+2}, v{vG+3}, s[12:13] sc1")
    a("s_mov_b64 exec, -1")
    a("s_branch L_dbgback")
    lab("L_spin")
    a(f"v_mov_b32 v{vG}, s18")
    a(f"buffer_load_dword v{vF}, off, s[36:39], s55 sc1")
    a(f"global_load_ubyte v{vF+1}, v{vG}, s[12:13] sc1")
    a("s_add_u32 s62, s62, 1")
    a("s_waitcnt vmcnt(0)")
    a(f"v_readfirstlane_b32 s61, v{vF}")
    a(f"v_readfirstlane_b32 s47, v{vF+1}")
    a("s_cmp_eq_u32 s61, s60")
    a("s_cbranch_scc1 L_got")
    a("s_cmp_lg_u32 s47, 0")
    a("s_cbranch_scc1 L_got")
    a("s_sleep 1")
    a("s_cmp_lt_u32 s62, 0x40000")
    a("s_cbranch_scc1 L_spin")
    lab("L_got")
    loadD()
    a("s_waitcnt vmcnt(0)")
    factors()
    a("s_branch L_fin")
    lab("L_end2")
    a("s_endpgm")
    body = "\n".join(L)
    src = HEADER + f"; @launch grid=(256,1,1) block=(256,1,1) lds={LDS}\n" + f""".amdgcn_target "amdgcn-amd-amdhsa--gfx950"
.text
.globl {name}
.p2align 8
.type {name},@function
{name}:
{body}
.section .rodata,"a"
.p2align 6
.amdhsa_kernel {name}
  .amdhsa_next_free_vgpr {NV}
  .amdhsa_next_free_sgpr 80
  .amdhsa_accum_offset {NV}
  .amdhsa_group_segment_fixed_size 0
  .amdhsa_kernarg_size 48
  .amdhsa_user_sgpr_count 2
  .amdhsa_user_sgpr_kernarg_segment_ptr 1
  .amdhsa_system_sgpr_workgroup_id_x 1
.end_amdhsa_kernel
"""
    return src

if __name__ == '__main__':
    out = sys.argv[1]
    kw = {}
    for x in sys.argv[2:]:
        k, v = x.split('=')
        kw[k] = int(v) if v.lstrip('-').isdigit() else v.replace('_', ' ')
    for k in ('POL', 'OPOL', 'QPOL'):
        if kw.get(k) == 'd': kw[k] = ''
    open(out, 'w').write(gen(**kw))
```
